```python
import torch

def _softmax(x, axis=-1):
    return torch.softmax(x, dim=axis)
def _gelu(x):
    return torch.nn.functional.gelu(x, approximate="tanh")
def _silu(x):
    return torch.nn.functional.silu(x)
def _sigmoid(x):
    return torch.sigmoid(x)
def _layernorm(x, axis=-1, eps=1e-5):
    m = x.mean(dim=axis, keepdim=True)
    v = x.var(dim=axis, keepdim=True, unbiased=False)
    return (x - m) / torch.sqrt(v + eps)
def _scatter_add(tgt, idx, src, axis=0):
    return tgt.clone().index_add_(axis, idx, src)
def _segment_sum(src, seg, n):
    out = torch.zeros((n,) + src.shape[1:], dtype=src.dtype)
    return out.index_add_(0, seg, src)
def _pad(x, pw):
    flat = tuple(v for pair in reversed(pw) for v in pair)
    return torch.nn.functional.pad(x, flat)

kernel_name = 'parallel_sum__ssm_conv_s4__mixer_channel_mlp__prompt'

def setup_inputs():

    _w = (lambda a: (lambda t: t.to(torch.bfloat16) if t.is_floating_point() else t)(torch.as_tensor(a)))
    def _A_setup():
        B, L, D, N = 1, 2048, 512, 128
        A_re = -(lambda _x: torch.exp(torch.as_tensor(_x)))((lambda *s: torch.randn(*s, dtype=torch.bfloat16) * 3.2)(D, N))
        A_im = torch.pi * (lambda *s: torch.randn(*s, dtype=torch.bfloat16) * 0.05)(D, N)
        B_re = (lambda *s: torch.randn(*s, dtype=torch.bfloat16) * 0.1)(D, N)
        B_im = (lambda *s: torch.randn(*s, dtype=torch.bfloat16) * 0.1)(D, N)
        C_re = (lambda *s: torch.randn(*s, dtype=torch.bfloat16) * 0.1)(D, N)
        C_im = (lambda *s: torch.randn(*s, dtype=torch.bfloat16) * 0.1)(D, N)
        log_dt = (lambda *s: torch.randn(*s, dtype=torch.bfloat16) * 0.05)(D) * 0.5 - 4.0
        Dskip = (lambda *s: torch.randn(*s, dtype=torch.bfloat16) * 0.05)(D)
        return {
            "u": _w((lambda *s: torch.randn(*s, dtype=torch.bfloat16) * 0.05)(B, L, D)),
            "A_re": _w(A_re),
            "A_im": _w(A_im),
            "B_re": _w(B_re),
            "B_im": _w(B_im),
            "C_re": _w(C_re),
            "C_im": _w(C_im),
            "log_dt": _w(log_dt),
            "Dskip": _w(Dskip),
        }
    _A_in = _A_setup()

    def _B_setup():
        B, S, D, F = 1, 2048, 512, 1792
        return {
            "x": _w((lambda *s: torch.randn(*s, dtype=torch.bfloat16) * 0.05)(B, S, D)),
            "w1": _w((lambda *s: torch.randn(*s, dtype=torch.bfloat16) * 1.6)(D, F) * (D ** -0.5)),
            "b1": _w((lambda *s: torch.randn(*s, dtype=torch.bfloat16) * 0.8)(F)),
            "w2": _w((lambda *s: torch.randn(*s, dtype=torch.bfloat16) * 0.05)(F, D) * (F ** -0.5)),
            "b2": _w((lambda *s: torch.randn(*s, dtype=torch.bfloat16) * 0.05)(D)),
        }
    _B_in = _B_setup()

    return {
        "A_u": _A_in["u"],
        "A_A_re": _A_in["A_re"],
        "A_A_im": _A_in["A_im"],
        "A_B_re": _A_in["B_re"],
        "A_B_im": _A_in["B_im"],
        "A_C_re": _A_in["C_re"],
        "A_C_im": _A_in["C_im"],
        "A_log_dt": _A_in["log_dt"],
        "A_Dskip": _A_in["Dskip"],
        "B_x": _B_in["x"],
        "B_w1": _B_in["w1"],
        "B_b1": _B_in["b1"],
        "B_w2": _B_in["w2"],
        "B_b2": _B_in["b2"],
    }

def reference(A_u, A_A_re, A_A_im, A_B_re, A_B_im, A_C_re, A_C_im, A_log_dt, A_Dskip, B_x, B_w1, B_b1, B_w2, B_b2):
    def _A_ref(u, A_re, A_im, B_re, B_im, C_re, C_im, log_dt, Dskip):
        Bsz, L, D = u.shape
        dt = torch.exp(log_dt)[:, None]
        A = A_re + 1j * A_im
        Bc = B_re + 1j * B_im
        Cc = C_re + 1j * C_im
        logdA = dt * A
        dB = dt * Bc
        l = (lambda x, dt: x.to(dt))(torch.arange(L), A_re.dtype)
        P = torch.exp(logdA[:, :, None] * l[None, None, :])
        K = torch.einsum("dn,dnl,dn->dl", Cc, P, dB).real
        L2 = 2 * L
        Kp = _pad(K, ((0, 0), (0, L)))
        up = (lambda x, *d: x.permute(*d))(u, 0, 2, 1)
        up = _pad(up, ((0, 0), (0, 0), (0, L)))
        Kf = (lambda x, axes=(-2,-1): torch.fft.rfft2(x.float(), dim=axes))(Kp[:, None, :], axes=(-2, -1))
        Uf = (lambda x, axes=(-2,-1): torch.fft.rfft2(x.float(), dim=axes))(up[:, :, None, :], axes=(-2, -1))
        Yf = Uf * Kf[None, :, :, :]
        y = (lambda x, s, axes=(-2,-1): torch.fft.irfft2(x, s=s, dim=axes).to(torch.bfloat16))(Yf, (1, L2), axes=(-2, -1))[:, :, 0, :L]
        y = (lambda x, *d: x.permute(*d))(y, 0, 2, 1) + u * Dskip[None, None, :]
        return y

    def _B_ref(x, w1, b1, w2, b2):
        y = _layernorm(x, axis=-1)
        h = _gelu(torch.einsum("bsd,df->bsf", y, w1) + b1)
        return torch.einsum("bsf,fd->bsd", h, w2) + b2

    x = A_u
    xn = _layernorm(x, axis=-1)
    return x + _A_ref(xn, A_A_re, A_A_im, A_B_re, A_B_im, A_C_re, A_C_im, A_log_dt, A_Dskip) + _B_ref(xn, B_w1, B_b1, B_w2, B_b2)
```

```python
class Asm:
    def __init__(self):
        self.lines = []
        self.uid = 0
    def __call__(self, s=""):
        for l in s.split("\n"):
            l = l.strip()
            if l:
                self.lines.append("    " + l)
    def label(self, name):
        self.lines.append(name + ":")
    def raw(self, s):
        self.lines.append(s)
    def newlabel(self, p="L"):
        self.uid += 1
        return f"{p}_{self.uid}"
    def text(self):
        return "\n".join(self.lines) + "\n"

def srd(a, d, b, size):
    a(f"s_mov_b32 s{d}, s{b}")
    a(f"s_mov_b32 s{d+1}, s{b+1}")
    a(f"s_mov_b32 s{d+2}, {size}")
    a(f"s_mov_b32 s{d+3}, 0x00020000")

def kdesc(name, vgpr, sgpr=102, accum=None):
    if accum is None:
        accum = (vgpr + 3)//4*4
    return f""".amdhsa_kernel {name}
  .amdhsa_next_free_vgpr {vgpr}
  .amdhsa_next_free_sgpr {sgpr}
  .amdhsa_accum_offset {accum}
  .amdhsa_group_segment_fixed_size 0
  .amdhsa_kernarg_size 136
  .amdhsa_user_sgpr_count 2
  .amdhsa_user_sgpr_kernarg_segment_ptr 1
  .amdhsa_system_sgpr_workgroup_id_x 1
.end_amdhsa_kernel
"""
```

```python
from asmlib import *
from k1 import *
def gemm_body(a, BN, BM, K, w_off, w_pitch, x_off, x_pitch, sN0, sM0, S, epi):
    TN=BN//64; TM=BM//64; NK=K//64; ST=(BN+BM)*128
    a("v_lshrrev_b32 v1, 6, v0")
    a("v_and_b32 v2, 63, v0")
    a("v_readfirstlane_b32 s40, v1")
    a("v_lshrrev_b32 v3, 3, v2")
    a("v_lshl_add_u32 v3, v1, 3, v3")
    a("v_lshrrev_b32 v4, 1, v3")
    a("v_and_b32 v4, 7, v4")
    a("v_and_b32 v5, 7, v2")
    a("v_xor_b32 v4, v4, v5")
    a("v_lshlrev_b32 v4, 4, v4")
    a(f"v_add_u32 v5, s{sN0}, v3")
    a(f"s_mov_b32 s41, {w_pitch}")
    a("v_mul_lo_u32 v5, v5, s41")
    a("v_add_u32 v5, v5, v4")
    a(f"v_add_u32 v6, s{sM0}, v3")
    a(f"s_mov_b32 s41, {x_pitch}")
    a("v_mul_lo_u32 v6, v6, s41")
    a("v_add_u32 v6, v6, v4")
    a("v_and_b32 v7, 31, v2")
    a("v_lshrrev_b32 v8, 5, v2")
    a("v_lshrrev_b32 v9, 1, v7")
    a("v_and_b32 v9, 7, v9")
    a("v_and_b32 v10, 1, v1")
    a("v_lshrrev_b32 v11, 1, v1")
    for ks in range(4):
        a(f"v_add_u32 v12, {2*ks}, v8")
        a("v_xor_b32 v12, v12, v9")
        a("v_lshlrev_b32 v12, 4, v12")
        a(f"v_lshl_add_u32 v12, v7, 7, v12")
        a(f"v_mul_u32_u24 v13, {BN//2*128}, v10")
        a(f"v_add_u32 v{16+ks}, v12, v13")
        a(f"v_mul_u32_u24 v13, {BM//2*128}, v11")
        a(f"v_add_u32 v13, {BN*128}, v13")
        a(f"v_add_u32 v{20+ks}, v12, v13")
    for i in range(16*TN*TM): a(f"v_mov_b32 v{64+i}, 0")
    nb_w=BN//32; nb_x=BM//32
    def issue(kt):
        st=kt%S
        for i in range(nb_w):
            a(f"s_lshl_b32 s42, s40, 10")
            a(f"s_add_u32 s42, s42, {st*ST+i*4096}")
            a("s_mov_b32 m0, s42")
            a(f"s_mov_b32 s43, {w_off+kt*128+i*32*w_pitch}")
            a("buffer_load_dwordx4 v5, s[12:15], s43 offen lds")
        for i in range(nb_x):
            a(f"s_lshl_b32 s42, s40, 10")
            a(f"s_add_u32 s42, s42, {st*ST+BN*128+i*4096}")
            a("s_mov_b32 m0, s42")
            a(f"s_mov_b32 s43, {x_off+kt*128+i*32*x_pitch}")
            a("buffer_load_dwordx4 v6, s[12:15], s43 offen lds")
    per=nb_w+nb_x
    for kt in range(min(S-1,NK)): issue(kt)
    for kt in range(NK):
        inflight=min(NK-1-kt, S-2)
        a(f"s_waitcnt vmcnt({inflight*per})")
        a("s_barrier")
        if kt+S-1<NK: issue(kt+S-1)
        st=kt%S
        for j in range(8): a(f"v_add_u32 v{24+j}, {st*ST}, v{16+j}")
        for ks in range(4):
            for tn in range(TN): a(f"ds_read_b128 v[{32+4*tn}:{35+4*tn}], v{24+ks} offset:{tn*4096}")
            for tm in range(TM): a(f"ds_read_b128 v[{48+4*tm}:{51+4*tm}], v{28+ks} offset:{tm*4096}")
            a("s_waitcnt lgkmcnt(0)")
            for tn in range(TN):
                for tm in range(TM):
                    c=64+16*(tn*TM+tm)
                    a(f"v_mfma_f32_32x32x16_bf16 v[{c}:{c+15}], v[{32+4*tn}:{35+4*tn}], v[{48+4*tm}:{51+4*tm}], v[{c}:{c+15}]")
    a("s_nop 7\n s_nop 7")
    epi(a, TN, TM)

def gelu(a, v, t1, t2):
    a(f"v_mul_f32 v{t1}, v{v}, v{v}")
    a(f"v_mul_f32 v{t1}, v{t1}, v{v}")
    a(f"v_mul_f32 v{t1}, 0x3d372713, v{t1}")
    a(f"v_add_f32 v{t1}, v{t1}, v{v}")
    a(f"v_mul_f32 v{t1}, 0xc0135761, v{t1}")
    a(f"v_exp_f32 v{t1}, v{t1}")
    a("s_nop 0")
    a(f"v_add_f32 v{t1}, 1.0, v{t1}")
    a(f"v_rcp_f32 v{t1}, v{t1}")
    a("s_nop 0")
    a(f"v_mul_f32 v{v}, v{v}, v{t1}")
    rbf(a, v)
```

```python
from asmlib import *
WS_XNT=0x0; WS_Y2=0x200000; WS_KR=0x400000; KR_PITCH=4160; WS_W1T=0x620000; WS_W2T=0x7E0000; WS_H=0x9A0000; WS_YA=0x10A0000
WS_SIZE=0x10000000
N_LN=64; N_KG=512; N_TR=448
K1_WGS=N_LN+N_KG+N_TR

def wave_sum(a, v):
    for sh in (1,2,4,8):
        a("s_nop 1")
        a(f"v_add_f32_dpp v{v}, v{v}, v{v} row_shr:{sh} row_mask:0xf bank_mask:0xf bound_ctrl:0")
    a("s_nop 1")
    a(f"v_add_f32_dpp v{v}, v{v}, v{v} row_bcast:15 row_mask:0xa bank_mask:0xf")
    a("s_nop 1")
    a(f"v_add_f32_dpp v{v}, v{v}, v{v} row_bcast:31 row_mask:0xc bank_mask:0xf")

def rbf(a, v):
    a(f"v_cvt_pk_bf16_f32 v{v}, v{v}, v{v}")
    a(f"v_lshlrev_b32 v{v}, 16, v{v}")

def ln_pass(a, xv, out, sM, t0):
    s=t0; q=t0+1; r=t0+2; u=t0+3
    a(f"v_add_f32 v{s}, v{xv[0]}, v{xv[1]}")
    for k in range(2,8): a(f"v_add_f32 v{s}, v{s}, v{xv[k]}")
    wave_sum(a, s)
    a("s_nop 1")
    a(f"v_readlane_b32 s{sM}, v{s}, 63")
    a("s_nop 3")
    a(f"v_mov_b32 v{s}, s{sM}")
    a(f"v_mul_f32 v{s}, 0x3b000000, v{s}")
    a(f"v_sub_f32 v{q}, v{xv[0]}, v{s}")
    a(f"v_mul_f32 v{r}, v{q}, v{q}")
    for k in range(1,8):
        a(f"v_sub_f32 v{q}, v{xv[k]}, v{s}")
        a(f"v_fmac_f32 v{r}, v{q}, v{q}")
    wave_sum(a, r)
    a("s_nop 1")
    a(f"v_readlane_b32 s{sM}, v{r}, 63")
    a("s_nop 3")
    a(f"v_mov_b32 v{r}, s{sM}")
    a(f"v_mul_f32 v{r}, 0x3b000000, v{r}")
    rbf(a, r)
    a(f"v_add_f32 v{r}, 0x3727c5ac, v{r}")
    rbf(a, r)
    a(f"v_sqrt_f32 v{r}, v{r}")
    a("s_nop 0")
    rbf(a, r)
    a(f"v_rcp_f32 v{u}, v{r}")
    a("s_nop 0")
    a(f"v_fma_f32 v{q}, -v{r}, v{u}, 1.0")
    a(f"v_fma_f32 v{u}, v{q}, v{u}, v{u}")
    rbf(a, s)
    for k in range(8):
        a(f"v_sub_f32 v{q}, v{xv[k]}, v{s}")
        rbf(a, q)
        a(f"v_mul_f32 v{out[k]}, v{q}, v{u}")
        a(f"v_fma_f32 v{q}, -v{r}, v{out[k]}, v{q}")
        a(f"v_fma_f32 v{out[k]}, v{q}, v{u}, v{out[k]}")
        rbf(a, out[k])

def gen_ln_body(a):
    a("v_lshrrev_b32 v1, 6, v0")
    a("v_and_b32 v2, 63, v0")
    a("s_lshl_b32 s3, s2, 5")
    a("v_lshlrev_b32 v3, 3, v1")
    a("v_add_u32 v3, s3, v3")
    a("v_lshlrev_b32 v4, 10, v3")
    a("v_lshl_add_u32 v4, v2, 4, v4")
    for i in range(8):
        a(f"v_add_u32 v9, {1024*i}, v4")
        a(f"buffer_load_dwordx4 v[{16+4*i}:{19+4*i}], v9, s[8:11], 0 offen")
    a("v_lshlrev_b32 v5, 3, v1")
    a("s_movk_i32 s4, 1040")
    a("v_mul_lo_u32 v5, v5, s4")
    a("v_lshl_add_u32 v5, v2, 4, v5")
    a("v_add_u32 v6, 0x%x, v4" % WS_Y2)
    a("s_waitcnt vmcnt(0)")
    X=list(range(48,56)); XN=list(range(56,64)); Y2=list(range(64,72))
    for i in range(8):
        for k in range(4):
            a(f"v_lshlrev_b32 v{X[2*k]}, 16, v{16+4*i+k}")
            a(f"v_and_b32 v{X[2*k+1]}, 0xffff0000, v{16+4*i+k}")
        ln_pass(a, X, XN, 20, 72)
        ln_pass(a, XN, Y2, 20, 72)
        for k in range(4):
            a(f"v_cvt_pk_bf16_f32 v{76+k}, v{XN[2*k]}, v{XN[2*k+1]}")
            a(f"v_cvt_pk_bf16_f32 v{80+k}, v{Y2[2*k]}, v{Y2[2*k+1]}")
        a(f"ds_write_b128 v5, v[76:79] offset:{1040*i}")
        a(f"v_add_u32 v9, {1024*i}, v6")
        a(f"buffer_store_dwordx4 v[80:83], v9, s[12:15], 0 offen")
        a("s_nop 1")
    a("s_waitcnt lgkmcnt(0)")
    a("s_barrier")
    a("v_lshlrev_b32 v7, 1, v0")
    a("v_lshlrev_b32 v8, 12, v0")
    a("s_lshl_b32 s4, s2, 6")
    a("v_add_u32 v8, s4, v8")
    for c in range(2):
        for g in range(4):
            for j in range(4):
                r0=8*g+2*j
                a(f"ds_read_u16 v{16+j}, v7 offset:{1040*r0+512*c}")
                a(f"ds_read_u16 v{20+j}, v7 offset:{1040*(r0+1)+512*c}")
            a("s_waitcnt lgkmcnt(0)")
            for j in range(4): a(f"v_lshl_or_b32 v{16+j}, v{20+j}, 16, v{16+j}")
            a(f"buffer_store_dwordx4 v[16:19], v8, s[12:15], 0 offen offset:{16*g}")
            a("s_nop 1")
        if c==0: a("v_add_u32 v8, 0x100000, v8")
    a("s_waitcnt vmcnt(0)")

KG_P0=2048
def gen_kgen_body(a):
    a("s_load_dwordx16 s[48:63], s[0:1], 8")
    a("v_and_b32 v1, 127, v0")
    a("s_lshl_b32 s25, s24, 8")
    a("v_lshl_add_u32 v2, v1, 1, s25")
    a("s_lshl_b32 s26, s24, 1")
    a("v_mov_b32 v3, s26")
    a("s_waitcnt lgkmcnt(0)")
    for k in range(6):
        a(f"global_load_ushort v{10+k}, v2, s[{48+2*k}:{49+2*k}]")
    a("global_load_ushort v16, v3, s[60:61]")
    a("s_waitcnt vmcnt(0)")
    for k in range(7): a(f"v_lshlrev_b32 v{10+k}, 16, v{10+k}")
    a("v_mul_f32 v16, 0x3fb8aa3b, v16")
    a("v_exp_f32 v16, v16")
    a("s_nop 0")
    rbf(a,16)
    a("v_mul_f32 v20, v10, v16")
    a("v_mul_f32 v20, 0x3fb8aa3b, v20")
    a("v_mul_f32 v21, v11, v16")
    a("v_mul_f32 v21, 0.15915494, v21")
    a("v_mul_f32 v12, v12, v16")
    a("v_mul_f32 v13, v13, v16")
    a("v_mul_f32 v22, v14, v12")
    a("v_fma_f32 v22, -v15, v13, v22")
    a("v_mul_f32 v23, v14, v13")
    a("v_fma_f32 v23, v15, v12, v23")
    a("v_lshlrev_b32 v4, 4, v1")
    a("ds_write_b128 v4, v[20:23]")
    a("s_waitcnt lgkmcnt(0)")
    a("s_barrier")
    a("v_lshrrev_b32 v1, 6, v0")
    a("v_and_b32 v2, 15, v0")
    a("v_bfe_u32 v3, v0, 4, 2")
    a("v_cvt_f32_u32 v4, v2")
    a("v_mul_f32 v5, 0x41800000, v4")
    a("v_mul_f32 v6, 0x42000000, v4")
    a("v_add_f32 v6, 0x43800000, v6")
    a("v_lshlrev_b32 v7, 9, v1")
    a("v_lshl_add_u32 v7, v3, 4, v7")
    for r in range(16): a(f"v_mov_b32 v{64+r}, 0")
    def cexp(e, dre, dim):
        a(f"v_mul_f32 v30, v8, v{e}")
        a(f"v_mul_f32 v31, v9, v{e}")
        a("v_fract_f32 v31, v31")
        a("v_exp_f32 v30, v30")
        a(f"v_cos_f32 v{dre}, v31")
        a(f"v_sin_f32 v{dim}, v31")
        a("s_nop 0")
        a(f"v_mul_f32 v{dre}, v{dre}, v30")
        a(f"v_mul_f32 v{dim}, v{dim}, v30")
    def csq(sre, sim, dre, dim):
        a(f"v_mul_f32 v{dre}, v{sre}, v{sre}")
        a(f"v_fma_f32 v{dre}, -v{sim}, v{sim}, v{dre}")
        a(f"v_mul_f32 v{dim}, v{sre}, v{sim}")
        a(f"v_add_f32 v{dim}, v{dim}, v{dim}")
    for pp in range(8):
        a(f"ds_read_b128 v[8:11], v7 offset:{64*pp}")
        a("s_waitcnt lgkmcnt(0)")
        cexp(4, 32, 33)
        csq(32,33,34,35); csq(34,35,36,37); csq(36,37,38,39)
        cexp(5, 40, 41)
        cexp(6, 42, 43)
        csq(42,43,44,45); csq(44,45,46,47)
        for s in range(4):
            w=40+2*s; z=32+2*s
            a(f"v_mul_f32 v48, v10, v{w}")
            a(f"v_fma_f32 v48, -v11, v{w+1}, v48")
            a(f"v_mul_f32 v49, v10, v{w+1}")
            a(f"v_fma_f32 v49, v11, v{w}, v49")
            a(f"v_sub_f32 v50, 0, v{z+1}")
            a("s_nop 1")
            a(f"v_mfma_f32_16x16x4_f32 v[{64+4*s}:{67+4*s}], v48, v{z}, v[{64+4*s}:{67+4*s}]")
            a(f"v_mfma_f32_16x16x4_f32 v[{64+4*s}:{67+4*s}], v49, v50, v[{64+4*s}:{67+4*s}]")
    a("s_nop 7\n s_nop 7")
    a("v_lshlrev_b32 v7, 12, v1")
    a("v_lshl_add_u32 v7, v3, 8, v7")
    a("v_lshl_add_u32 v7, v2, 2, v7")
    for s in range(4):
        for r in range(4):
            a(f"ds_write_b32 v7, v{64+4*s+r} offset:{KG_P0+1024*s+64*r}")
    a("s_waitcnt lgkmcnt(0)")
    a("s_barrier")
    a(f"s_movk_i32 s27, {KR_PITCH}")
    a("s_mul_i32 s27, s27, s24")
    a("s_add_u32 s27, s27, 0x%x" % WS_KR)
    for it in range(2):
        a("v_mov_b32 v1, v0" if it==0 else "v_add_u32 v1, 256, v0\n v_min_u32 v1, 0x103, v1")
        for e in range(8):
            a(f"v_lshlrev_b32 v2, 3, v1")
            a(f"v_sub_u32 v2, {2048-e}, v2")
            a("v_or_b32 v3, 1, v2")
            a("v_ffbh_u32 v3, v3")
            a("v_sub_u32 v3, 24, v3")
            a("v_max_i32 v3, 0, v3")
            a("v_lshlrev_b32 v4, v3, 1")
            a("v_lshrrev_b32 v4, 1, v4")
            a("v_lshrrev_b32 v5, v3, v2")
            a("v_and_b32 v5, 1, v5")
            a("v_add3_u32 v4, v4, v5, -1")
            a("v_max_i32 v4, 0, v4")
            a("v_add_u32 v4, v4, v2")
            a("v_lshrrev_b32 v4, v3, v4")
            a("v_lshlrev_b32 v5, 8, v3")
            a("v_subrev_u32 v5, 128, v5")
            a("v_max_i32 v5, 0, v5")
            a("v_add_u32 v4, v4, v5")
            a("v_min_u32 v4, 0x3ff, v4")
            a("v_lshlrev_b32 v4, 2, v4")
            for w in range(4):
                a(f"ds_read_b32 v{20+w}, v4 offset:{KG_P0+4096*w}")
            a("s_waitcnt lgkmcnt(0)")
            a("v_add_f32 v20, v20, v21")
            a("v_add_f32 v22, v22, v23")
            a("v_add_f32 v20, v20, v22")
            a("v_cmp_gt_u32 vcc, 0x800, v2")
            a("s_nop 1")
            a(f"v_cndmask_b32 v{8+e}, 0, v20, vcc")
        for k in range(4): a(f"v_cvt_pk_bf16_f32 v{24+k}, v{8+2*k}, v{9+2*k}")
        a("v_lshlrev_b32 v2, 4, v1")
        a("v_add_u32 v2, s27, v2")
        a("buffer_store_dwordx4 v[24:27], v2, s[12:15], 0 offen")
        a("s_nop 1")
    a("s_waitcnt vmcnt(0)")

def gen_tr_body(a):
    l2=a.newlabel("tr_w2"); lj=a.newlabel("tr_j")
    a("s_cmp_ge_u32 s24, 224")
    a(f"s_cbranch_scc1 {l2}")
    a("s_load_dwordx2 s[4:5], s[0:1], 80")
    a("s_mov_b32 s28, 1792")
    a("s_mov_b32 s29, 512")
    a("s_mul_hi_u32 s30, s24, 0x924924A")
    a("s_mul_i32 s31, s30, 28")
    a("s_sub_u32 s31, s24, s31")
    a("s_mov_b32 s32, 0x%x" % WS_W1T)
    a(f"s_branch {lj}")
    a.label(l2)
    a("s_load_dwordx2 s[4:5], s[0:1], 96")
    a("s_mov_b32 s28, 512")
    a("s_mov_b32 s29, 1792")
    a("s_sub_u32 s33, s24, 224")
    a("s_lshr_b32 s30, s33, 3")
    a("s_and_b32 s31, s33, 7")
    a("s_mov_b32 s32, 0x%x" % WS_W2T)
    a.label(lj)
    a("s_waitcnt lgkmcnt(0)")
    srd(a, 16, 4, 0x1C0000)
    a("v_lshrrev_b32 v1, 2, v0")
    a("v_and_b32 v2, 3, v0")
    a("s_lshl_b32 s33, s30, 6")
    a("v_add_u32 v3, s33, v1")
    a("v_mul_lo_u32 v3, v3, s28")
    a("s_lshl_b32 s34, s31, 6")
    a("v_add_u32 v3, s34, v3")
    a("v_lshlrev_b32 v3, 1, v3")
    a("v_lshl_add_u32 v3, v2, 5, v3")
    a("buffer_load_dwordx4 v[8:11], v3, s[16:19], 0 offen")
    a("buffer_load_dwordx4 v[12:15], v3, s[16:19], 0 offen offset:16")
    a("s_movk_i32 s35, 144")
    a("v_mul_lo_u32 v4, v1, s35")
    a("v_lshl_add_u32 v4, v2, 5, v4")
    a("s_waitcnt vmcnt(0)")
    a("ds_write_b128 v4, v[8:11]")
    a("ds_write_b128 v4, v[12:15] offset:16")
    a("s_waitcnt lgkmcnt(0)")
    a("s_barrier")
    a("v_lshlrev_b32 v5, 1, v1")
    a("s_movk_i32 s35, 2304")
    a("v_mul_lo_u32 v6, v2, s35")
    a("v_add_u32 v5, v5, v6")
    for j in range(8):
        a(f"ds_read_u16 v{8+j}, v5 offset:{144*(2*j)}")
        a(f"ds_read_u16 v{16+j}, v5 offset:{144*(2*j+1)}")
    a("v_add_u32 v3, s34, v1")
    a("v_mul_lo_u32 v3, v3, s29")
    a("v_add_u32 v3, s33, v3")
    a("v_lshlrev_b32 v3, 1, v3")
    a("v_lshl_add_u32 v3, v2, 5, v3")
    a("v_add_u32 v3, s32, v3")
    a("s_waitcnt lgkmcnt(0)")
    for j in range(8): a(f"v_lshl_or_b32 v{8+j}, v{16+j}, 16, v{8+j}")
    a("buffer_store_dwordx4 v[8:11], v3, s[12:15], 0 offen")
    a("buffer_store_dwordx4 v[12:15], v3, s[12:15], 0 offen offset:16")
    a("s_waitcnt vmcnt(0)")

def gen_k1(a, name="k1_kernel"):
    a.raw(f".globl {name}\n.p2align 8\n.type {name},@function")
    a.label(name)
    lk=a.newlabel("k1_kg"); lt=a.newlabel("k1_tr"); le=a.newlabel("k1_end")
    a(f"s_cmp_ge_u32 s2, {K1_WGS}")
    a(f"s_cbranch_scc1 {le}")
    a("s_load_dwordx2 s[4:5], s[0:1], 0")
    a("s_load_dwordx2 s[6:7], s[0:1], 128")
    a("s_waitcnt lgkmcnt(0)")
    srd(a, 8, 4, 0x200000); srd(a, 12, 6, WS_SIZE)
    a(f"s_cmp_ge_u32 s2, {N_LN}")
    a(f"s_cbranch_scc1 {lk}")
    gen_ln_body(a)
    a("s_endpgm")
    a.label(lk)
    a(f"s_sub_u32 s24, s2, {N_LN}")
    a(f"s_cmp_ge_u32 s24, {N_KG}")
    a(f"s_cbranch_scc1 {lt}")
    gen_kgen_body(a)
    a("s_endpgm")
    a.label(lt)
    a(f"s_sub_u32 s24, s24, {N_KG}")
    gen_tr_body(a)
    a.label(le)
    a("s_endpgm")
```

```python
from asmlib import *
from k1 import *
from gemm import *
N_G1=224; N_CONV=512; K2_WGS=N_G1+N_CONV
CP=4160; U0=8*CP; RED=U0+7680
def epi1(a,TN,TM):
    a("s_load_dwordx2 s[4:5], s[0:1], 88")
    a("s_waitcnt lgkmcnt(0)")
    srd(a,16,4,3584)
    for tn in range(TN):
        for tm in range(TM):
            c=64+16*(tn*TM+tm)
            for q in range(4):
                a("v_lshlrev_b32 v12, 6, v10")
                a("v_lshl_add_u32 v12, v8, 2, v12")
                a(f"v_add_u32 v12, s44, v12")
                a(f"v_add_u32 v12, {tn*32+8*q}, v12")
                a("v_lshlrev_b32 v13, 1, v12")
                a("buffer_load_dwordx2 v[14:15], v13, s[16:19], 0 offen")
                a("v_lshlrev_b32 v30, 6, v11")
                a("v_add_u32 v30, v30, v7")
                a(f"v_add_u32 v30, s45, v30")
                a(f"v_add_u32 v30, {tm*32}, v30")
                a("s_movk_i32 s41, 3584")
                a("v_mul_lo_u32 v30, v30, s41")
                a("v_add_u32 v30, v30, v13")
                a("v_add_u32 v30, 0x%x, v30"%WS_H)
                a("s_waitcnt vmcnt(0)")
                for r in range(4):
                    v=c+4*q+r
                    rbf(a,v)
                    a(f"v_lshlrev_b32 v31, 16, v{14+r//2}" if r%2==0 else f"v_and_b32 v31, 0xffff0000, v{14+r//2}")
                    a(f"v_add_f32 v{v}, v{v}, v31")
                    rbf(a,v)
                    gelu(a,v,31,29)
                a(f"v_cvt_pk_bf16_f32 v32, v{c+4*q}, v{c+4*q+1}")
                a(f"v_cvt_pk_bf16_f32 v33, v{c+4*q+2}, v{c+4*q+3}")
                a("buffer_store_dwordx2 v[32:33], v30, s[12:15], 0 offen")
                a("s_nop 1")
    a("s_waitcnt vmcnt(0)")
def epi2(a,TN,TM):
    a("s_load_dwordx2 s[4:5], s[0:1], 104")
    a("s_load_dwordx2 s[6:7], s[0:1], 0")
    a("s_load_dwordx2 s[20:21], s[0:1], 112")
    a("s_waitcnt lgkmcnt(0)")
    srd(a,16,4,1024); srd(a,24,6,0x200000); srd(a,28,20,0x200000)
    c=64
    for q in range(4):
        a("v_lshlrev_b32 v12, 5, v10")
        a("v_lshl_add_u32 v12, v8, 2, v12")
        a("v_add_u32 v12, s44, v12")
        a(f"v_add_u32 v12, {8*q}, v12")
        a("v_lshlrev_b32 v13, 1, v12")
        a("buffer_load_dwordx2 v[14:15], v13, s[16:19], 0 offen")
        a("v_lshlrev_b32 v30, 5, v11")
        a("v_add_u32 v30, v30, v7")
        a("v_add_u32 v30, s45, v30")
        a("v_lshl_add_u32 v31, v30, 10, v13")
        a("buffer_load_dwordx2 v[34:35], v31, s[24:27], 0 offen")
        a("v_lshlrev_b32 v36, 12, v12")
        a("v_lshl_add_u32 v36, v30, 1, v36")
        a("v_add_u32 v36, 0x%x, v36"%WS_YA)
        for r in range(4):
            a(f"v_add_u32 v37, {4096*r}, v36")
            a(f"buffer_load_ushort v{40+r}, v37, s[12:15], 0 offen")
        a("s_waitcnt vmcnt(0)")
        for r in range(4):
            v=c+4*q+r
            rbf(a,v)
            a(f"v_lshlrev_b32 v38, 16, v{14+r//2}" if r%2==0 else f"v_and_b32 v38, 0xffff0000, v{14+r//2}")
            a(f"v_add_f32 v{v}, v{v}, v38")
            rbf(a,v)
            a(f"v_lshlrev_b32 v38, 16, v{34+r//2}" if r%2==0 else f"v_and_b32 v38, 0xffff0000, v{34+r//2}")
            a(f"v_lshlrev_b32 v39, 16, v{40+r}")
            a("v_add_f32 v38, v38, v39")
            rbf(a,38)
            a(f"v_add_f32 v{v}, v{v}, v38")
        a(f"v_cvt_pk_bf16_f32 v32, v{c+4*q}, v{c+4*q+1}")
        a(f"v_cvt_pk_bf16_f32 v33, v{c+4*q+2}, v{c+4*q+3}")
        a("buffer_store_dwordx2 v[32:33], v31, s[28:31], 0 offen")
        a("s_nop 1")
    a("s_waitcnt vmcnt(0)")

def conv_body(a):
    a(f"s_movk_i32 s27, {KR_PITCH}")
    a("s_mul_i32 s27, s27, s24")
    a("s_add_u32 s27, s27, 0x%x"%WS_KR)
    a("s_lshl_b32 s28, s24, 12")
    a("v_lshrrev_b32 v1, 6, v0")
    a("v_and_b32 v2, 63, v0")
    a("v_mov_b32 v8, 0\n v_mov_b32 v9, 0\n v_mov_b32 v10, 0\n v_mov_b32 v11, 0")
    a("v_min_u32 v3, 159, v0")
    a("v_lshlrev_b32 v3, 4, v3")
    a(f"ds_write_b128 v3, v[8:11] offset:{U0}")
    a("v_lshlrev_b32 v3, 4, v0")
    a("v_add_u32 v3, s28, v3")
    a("buffer_load_dwordx4 v[12:15], v3, s[12:15], 0 offen")
    for it in range(2):
        a("v_mov_b32 v4, v0" if it==0 else "v_add_u32 v4, 256, v0\n v_min_u32 v4, 0x103, v4")
        a("s_nop 0")
        a(f"v_lshlrev_b32 v{5+it}, 4, v4")
        a(f"v_add_u32 v{5+it}, s27, v{5+it}")
        a(f"v_subrev_u32 v7, 16, v{5+it}")
        a(f"buffer_load_dwordx4 v[{16+8*it}:{19+8*it}], v7, s[12:15], 0 offen")
        a(f"buffer_load_dwordx4 v[{20+8*it}:{23+8*it}], v{5+it}, s[12:15], 0 offen")
    a("v_lshrrev_b32 v3, 2, v0")
    a("v_add_u32 v3, 32, v3")
    a("s_movk_i32 s29, 80")
    a("v_mul_lo_u32 v3, v3, s29")
    a("v_and_b32 v4, 3, v0")
    a("v_lshl_add_u32 v3, v4, 4, v3")
    a("s_waitcnt vmcnt(0)")
    a(f"ds_write_b128 v3, v[12:15] offset:{U0}")
    for it in range(2):
        a("v_mov_b32 v4, v0" if it==0 else "v_add_u32 v4, 256, v0\n v_min_u32 v4, 0x103, v4")
        a("v_cmp_eq_u32 vcc, 0, v4")
        a("s_nop 1")
        for k in range(4): a(f"v_cndmask_b32 v{16+8*it+k}, v{16+8*it+k}, 0, vcc")
        a("v_lshlrev_b32 v4, 4, v4")
        W=[16+8*it+k for k in range(8)]
        for q in range(8):
            for k in range(4):
                e=8-q+2*k
                if e%2==0: a(f"v_mov_b32 v{40+k}, v{W[e//2]}")
                else: a(f"v_alignbit_b32 v{40+k}, v{W[e//2+1]}, v{W[e//2]}, 16")
            a(f"ds_write_b128 v4, v[40:43] offset:{q*CP}")
            a("s_nop 1")
    a("s_waitcnt lgkmcnt(0)")
    a("s_barrier")
    le=a.newlabel("cv_skip")
    a("v_readfirstlane_b32 s30, v1")
    a("s_nop 3")
    a("s_cmp_eq_u32 s30, 3")
    a(f"s_cbranch_scc1 {le}")
    a("v_and_b32 v7, 31, v2\n v_lshrrev_b32 v8, 5, v2")
    a("v_and_b32 v3, 7, v7")
    a(f"v_mul_u32_u24 v3, {CP}, v3")
    a("v_and_b32 v4, 24, v7")
    a("v_lshlrev_b32 v4, 1, v4")
    a("v_sub_u32 v3, v3, v4")
    a("v_lshl_add_u32 v3, v8, 4, v3")
    a("s_lshr_b32 s31, s30, 1")
    a("s_mul_i32 s32, s31, 2048")
    a("s_sub_u32 s32, %d, s32"%(4096-2048))
    a("v_add_u32 v3, s32, v3")
    a("s_min_u32 s33, s30, 1")
    a("s_mul_i32 s33, s33, 32")
    a("s_mul_i32 s34, s31, 32")
    a("s_sub_u32 s33, s33, s34")
    a("v_add_u32 v4, s33, v7")
    a("v_mul_lo_u32 v4, v4, s29")
    a("v_lshl_add_u32 v4, v8, 4, v4")
    for r in range(16): a(f"v_mov_b32 v{64+r}, 0")
    lm=a.newlabel("cv_m"); a("s_cmp_eq_u32 s30, 2"); a(f"s_cbranch_scc1 {lm}")
    a("ds_read_b128 v[32:35], v3 offset:2080")
    a(f"ds_read_b128 v[36:39], v4 offset:{U0+32*80+32}")
    a("s_waitcnt lgkmcnt(0)")
    a("v_mfma_f32_32x32x16_bf16 v[64:79], v[32:35], v[36:39], v[64:79]")
    a.label(lm)
    for s in range(64):
        if s==63:
            lsk=a.newlabel("cv_l"); a("s_cmp_eq_u32 s30, 2"); a(f"s_cbranch_scc1 {lsk}")
        sg=s//2
        boff=U0+(32-sg)*80 if s%2==0 else U0+(32-sg-1)*80+32
        a(f"ds_read_b128 v[32:35], v3 offset:{32*(64-s)}")
        a(f"ds_read_b128 v[36:39], v4 offset:{boff}")
        a("s_waitcnt lgkmcnt(0)")
        a("v_mfma_f32_32x32x16_bf16 v[64:79], v[32:35], v[36:39], v[64:79]")
    a.label(lsk)
    a("s_nop 7\n s_nop 7")
    a("v_lshlrev_b32 v5, 7, v7")
    a("v_lshl_add_u32 v5, v8, 4, v5")
    a("v_lshl_add_u32 v5, v1, 12, v5")
    for q in range(4): a(f"ds_write_b128 v5, v[{64+4*q}:{67+4*q}] offset:{RED+32*q}")
    a.label(le)
    a("s_waitcnt lgkmcnt(0)")
    a("s_barrier")
    a("s_load_dwordx2 s[4:5], s[0:1], 64")
    a("s_lshl_b32 s6, s24, 1")
    a("v_mov_b32 v9, s6")
    a("s_waitcnt lgkmcnt(0)")
    a("global_load_ushort v9, v9, s[4:5]")
    a("v_lshlrev_b32 v3, 5, v0")
    a("v_cmp_lt_u32 vcc, 0x7f, v0")
    a("v_mov_b32 v6, 0x1000")
    a("s_nop 1")
    a("v_cndmask_b32 v6, 0, v6, vcc")
    a(f"ds_read_b128 v[16:19], v3 offset:{RED}")
    a(f"ds_read_b128 v[20:23], v3 offset:{RED+16}")
    a("v_add_u32 v7, v3, v6")
    a(f"ds_read_b128 v[24:27], v7 offset:{RED}")
    a(f"ds_read_b128 v[28:31], v7 offset:{RED+16}")
    a("v_lshrrev_b32 v4, 2, v0")
    a("v_add_u32 v4, 32, v4")
    a("v_mul_lo_u32 v4, v4, s29")
    a("v_and_b32 v5, 3, v0")
    a("v_lshl_add_u32 v4, v5, 4, v4")
    a(f"ds_read_b128 v[12:15], v4 offset:{U0}")
    a("v_cndmask_b32 v8, 0, 1.0, vcc")
    a("s_waitcnt vmcnt(0) lgkmcnt(0)")
    a("v_lshlrev_b32 v9, 16, v9")
    for e in range(8):
        a(f"v_fma_f32 v{16+e}, v{24+e}, v8, v{16+e}")
        rbf(a,16+e)
        a(f"v_lshlrev_b32 v10, 16, v{12+e//2}" if e%2==0 else f"v_and_b32 v10, 0xffff0000, v{12+e//2}")
        a("v_mul_f32 v10, v10, v9")
        rbf(a,10)
        a(f"v_add_f32 v{16+e}, v{16+e}, v10")
    for k in range(4): a(f"v_cvt_pk_bf16_f32 v{40+k}, v{16+2*k}, v{17+2*k}")
    a("v_lshlrev_b32 v3, 4, v0")
    a("v_add_u32 v3, s28, v3")
    a("v_add_u32 v3, 0x%x, v3"%WS_YA)
    a("buffer_store_dwordx4 v[40:43], v3, s[12:15], 0 offen")
    a("s_waitcnt vmcnt(0)")

def prolog(a,name,n):
    a.raw(f".globl {name}\n.p2align 8\n.type {name},@function")
    a.label(name)
    le=a.newlabel("end")
    a(f"s_cmp_ge_u32 s2, {n}")
    a(f"s_cbranch_scc1 {le}")
    a("s_load_dwordx2 s[6:7], s[0:1], 128")
    a("s_waitcnt lgkmcnt(0)")
    srd(a,12,6,WS_SIZE)
    return le
def gen_k2(a):
    le=prolog(a,"k2_kernel",K2_WGS); lc=a.newlabel("conv")
    a(f"s_cmp_ge_u32 s2, {N_G1}")
    a(f"s_cbranch_scc1 {lc}")
    a("s_lshr_b32 s44, s2, 4\n s_lshl_b32 s44, s44, 7")
    a("s_and_b32 s45, s2, 15\n s_lshl_b32 s45, s45, 7")
    gemm_body(a,128,128,512,WS_W1T,1024,WS_Y2,1024,44,45,2,epi1)
    a("s_endpgm")
    a.label(lc)
    a(f"s_sub_u32 s24, s2, {N_G1}")
    conv_body(a)
    a.label(le); a("s_endpgm")
def gen_k3(a):
    le=prolog(a,"k3_kernel",256)
    a("s_lshr_b32 s44, s2, 5\n s_lshl_b32 s44, s44, 6")
    a("s_and_b32 s45, s2, 31\n s_lshl_b32 s45, s45, 6")
    gemm_body(a,64,64,1792,WS_W2T,3584,WS_H,3584,44,45,4,epi2)
    a.label(le); a("s_endpgm")
```

```python
import sys
from asmlib import *
import k1,k23
def build():
    h=open("parallel_sum__ssm_conv_s4__mixer_channel_mlp__prompt.s.ref").read().split("; Override")[0]
    a=Asm(); k1.gen_k1(a); k23.gen_k2(a); k23.gen_k3(a)
    L=[f"; @launch kernel=k1_kernel grid=({k1.K1_WGS},1,1) block=(256,1,1) lds=33280",
       f"; @launch kernel=k2_kernel grid=({k23.K2_WGS},1,1) block=(256,1,1) lds=65536",
       "; @launch kernel=k3_kernel grid=(256,1,1) block=(512,1,1) lds=147456"]
    D="".join(".p2align 6\n"+kdesc(n,v) for n,v in (("k1_kernel",96),("k2_kernel",144),("k3_kernel",128)))
    return h+"\n".join(L)+"\n.amdgcn_target \"amdgcn-amd-amdhsa--gfx950\"\n.text\n"+a.text()+".section .rodata,\"a\"\n"+D
open(sys.argv[1],"w").write(build())
```

```python
from asmlib import *
from k1 import *
def gemm_body(a, BN, BM, K, w_off, w_pitch, x_off, x_pitch, sN0, sM0, S, epi, pre=None):
    TN=BN//64; TM=BM//64; NK=K//64; ST=(BN+BM)*128
    a("v_lshrrev_b32 v1, 6, v0")
    a("v_and_b32 v2, 63, v0")
    a("v_readfirstlane_b32 s40, v1")
    a("v_lshrrev_b32 v3, 3, v2")
    a("v_lshl_add_u32 v3, v1, 3, v3")
    a("v_lshrrev_b32 v4, 1, v3")
    a("v_and_b32 v4, 7, v4")
    a("v_and_b32 v5, 7, v2")
    a("v_xor_b32 v4, v4, v5")
    a("v_lshlrev_b32 v4, 4, v4")
    a(f"v_add_u32 v5, s{sN0}, v3")
    a(f"s_mov_b32 s41, {w_pitch}")
    a("v_mul_lo_u32 v5, v5, s41")
    a("v_add_u32 v5, v5, v4")
    a(f"v_add_u32 v6, s{sM0}, v3")
    a(f"s_mov_b32 s41, {x_pitch}")
    a("v_mul_lo_u32 v6, v6, s41")
    a("v_add_u32 v6, v6, v4")
    a("v_and_b32 v7, 31, v2")
    a("v_lshrrev_b32 v8, 5, v2")
    a("v_lshrrev_b32 v9, 1, v7")
    a("v_and_b32 v9, 7, v9")
    a("v_and_b32 v10, 1, v1")
    a("v_lshrrev_b32 v11, 1, v1")
    for ks in range(4):
        a(f"v_add_u32 v12, {2*ks}, v8")
        a("v_xor_b32 v12, v12, v9")
        a("v_lshlrev_b32 v12, 4, v12")
        a(f"v_lshl_add_u32 v12, v7, 7, v12")
        a(f"v_mul_u32_u24 v13, {BN//2*128}, v10")
        a(f"v_add_u32 v{16+ks}, v12, v13")
        a(f"v_mul_u32_u24 v13, {BM//2*128}, v11")
        a(f"v_add_u32 v13, {BN*128}, v13")
        a(f"v_add_u32 v{20+ks}, v12, v13")
    for i in range(16*TN*TM): a(f"v_mov_b32 v{64+i}, 0")
    if pre: pre(a,TN,TM)
    nb_w=BN//32; nb_x=BM//32
    def issue(kt):
        st=kt%S
        for i in range(nb_w):
            a(f"s_lshl_b32 s42, s40, 10")
            a(f"s_add_u32 s42, s42, {st*ST+i*4096}")
            a("s_mov_b32 m0, s42")
            a(f"s_mov_b32 s43, {w_off+kt*128+i*32*w_pitch}")
            a("buffer_load_dwordx4 v5, s[12:15], s43 offen lds")
        for i in range(nb_x):
            a(f"s_lshl_b32 s42, s40, 10")
            a(f"s_add_u32 s42, s42, {st*ST+BN*128+i*4096}")
            a("s_mov_b32 m0, s42")
            a(f"s_mov_b32 s43, {x_off+kt*128+i*32*x_pitch}")
            a("buffer_load_dwordx4 v6, s[12:15], s43 offen lds")
    per=nb_w+nb_x
    for kt in range(min(S-1,NK)): issue(kt)
    for kt in range(NK):
        inflight=min(NK-1-kt, S-2)
        a(f"s_waitcnt vmcnt({inflight*per})")
        a("s_barrier")
        if kt+S-1<NK: issue(kt+S-1)
        st=kt%S
        for j in range(8): a(f"v_add_u32 v{24+j}, {st*ST}, v{16+j}")
        def rd(ks):
            b=8*(ks%2)
            for tn in range(TN): a(f"ds_read_b128 v[{32+b+4*tn}:{35+b+4*tn}], v{24+ks} offset:{tn*4096}")
            for tm in range(TM): a(f"ds_read_b128 v[{48+b+4*tm}:{51+b+4*tm}], v{28+ks} offset:{tm*4096}")
        rd(0)
        for ks in range(4):
            if ks<3: rd(ks+1)
            a(f"s_waitcnt lgkmcnt({(TN+TM) if ks<3 else 0})")
            b=8*(ks%2)
            for tn in range(TN):
                for tm in range(TM):
                    c=64+16*(tn*TM+tm)
                    a(f"v_mfma_f32_32x32x16_bf16 v[{c}:{c+15}], v[{32+b+4*tn}:{35+b+4*tn}], v[{48+b+4*tm}:{51+b+4*tm}], v[{c}:{c+15}]")
    a("s_nop 7\n s_nop 7")
    epi(a, TN, TM)

def gelu(a, v, t1, t2):
    a(f"v_mul_f32 v{t1}, v{v}, v{v}")
    a(f"v_mul_f32 v{t1}, v{t1}, v{v}")
    a(f"v_mul_f32 v{t1}, 0x3d372713, v{t1}")
    a(f"v_add_f32 v{t1}, v{t1}, v{v}")
    a(f"v_mul_f32 v{t1}, 0xc0135761, v{t1}")
    a(f"v_exp_f32 v{t1}, v{t1}")
    a("s_nop 0")
    a(f"v_add_f32 v{t1}, 1.0, v{t1}")
    a(f"v_rcp_f32 v{t1}, v{t1}")
    a("s_nop 0")
    a(f"v_mul_f32 v{v}, v{v}, v{t1}")
    rbf(a, v)
```

```python
from asmlib import *
from k1 import *
from gemm import *
N_G1=224; N_CONV=512; K2_WGS=N_G1+N_CONV
CP=4160; U0=8*CP; RED=U0+7680
def epi1(a,TN,TM):
    a("s_load_dwordx2 s[4:5], s[0:1], 88")
    a("s_waitcnt lgkmcnt(0)")
    srd(a,16,4,3584)
    for tn in range(TN):
        for tm in range(TM):
            c=64+16*(tn*TM+tm)
            for q in range(4):
                a("v_lshlrev_b32 v12, 6, v10")
                a("v_lshl_add_u32 v12, v8, 2, v12")
                a(f"v_add_u32 v12, s44, v12")
                a(f"v_add_u32 v12, {tn*32+8*q}, v12")
                a("v_lshlrev_b32 v13, 1, v12")
                a("buffer_load_dwordx2 v[14:15], v13, s[16:19], 0 offen")
                a("v_lshlrev_b32 v30, 6, v11")
                a("v_add_u32 v30, v30, v7")
                a(f"v_add_u32 v30, s45, v30")
                a(f"v_add_u32 v30, {tm*32}, v30")
                a("s_movk_i32 s41, 3584")
                a("v_mul_lo_u32 v30, v30, s41")
                a("v_add_u32 v30, v30, v13")
                a("v_add_u32 v30, 0x%x, v30"%WS_H)
                a("s_waitcnt vmcnt(0)")
                for r in range(4):
                    v=c+4*q+r
                    rbf(a,v)
                    a(f"v_lshlrev_b32 v31, 16, v{14+r//2}" if r%2==0 else f"v_and_b32 v31, 0xffff0000, v{14+r//2}")
                    a(f"v_add_f32 v{v}, v{v}, v31")
                    rbf(a,v)
                    gelu(a,v,31,29)
                a(f"v_cvt_pk_bf16_f32 v32, v{c+4*q}, v{c+4*q+1}")
                a(f"v_cvt_pk_bf16_f32 v33, v{c+4*q+2}, v{c+4*q+3}")
                a("buffer_store_dwordx2 v[32:33], v30, s[12:15], 0 offen")
                a("s_nop 1")
    a("s_waitcnt vmcnt(0)")
def epi2(a,TN,TM):
    a("s_load_dwordx2 s[4:5], s[0:1], 104")
    a("s_load_dwordx2 s[6:7], s[0:1], 0")
    a("s_load_dwordx2 s[20:21], s[0:1], 112")
    a("s_waitcnt lgkmcnt(0)")
    srd(a,16,4,1024); srd(a,24,6,0x200000); srd(a,28,20,0x200000)
    c=64
    for q in range(4):
        a("v_lshlrev_b32 v12, 5, v10")
        a("v_lshl_add_u32 v12, v8, 2, v12")
        a("v_add_u32 v12, s44, v12")
        a(f"v_add_u32 v12, {8*q}, v12")
        a("v_lshlrev_b32 v13, 1, v12")
        a("buffer_load_dwordx2 v[14:15], v13, s[16:19], 0 offen")
        a("v_lshlrev_b32 v30, 5, v11")
        a("v_add_u32 v30, v30, v7")
        a("v_add_u32 v30, s45, v30")
        a("v_lshl_add_u32 v31, v30, 10, v13")
        a("buffer_load_dwordx2 v[34:35], v31, s[24:27], 0 offen")
        a("v_lshlrev_b32 v36, 12, v12")
        a("v_lshl_add_u32 v36, v30, 1, v36")
        a("v_add_u32 v36, 0x%x, v36"%WS_YA)
        for r in range(4):
            a(f"v_add_u32 v37, {4096*r}, v36")
            a(f"buffer_load_ushort v{40+r}, v37, s[12:15], 0 offen")
        a("s_waitcnt vmcnt(0)")
        for r in range(4):
            v=c+4*q+r
            rbf(a,v)
            a(f"v_lshlrev_b32 v38, 16, v{14+r//2}" if r%2==0 else f"v_and_b32 v38, 0xffff0000, v{14+r//2}")
            a(f"v_add_f32 v{v}, v{v}, v38")
            rbf(a,v)
            a(f"v_lshlrev_b32 v38, 16, v{34+r//2}" if r%2==0 else f"v_and_b32 v38, 0xffff0000, v{34+r//2}")
            a(f"v_lshlrev_b32 v39, 16, v{40+r}")
            a("v_add_f32 v38, v38, v39")
            rbf(a,38)
            a(f"v_add_f32 v{v}, v{v}, v38")
        a(f"v_cvt_pk_bf16_f32 v32, v{c+4*q}, v{c+4*q+1}")
        a(f"v_cvt_pk_bf16_f32 v33, v{c+4*q+2}, v{c+4*q+3}")
        a("buffer_store_dwordx2 v[32:33], v31, s[28:31], 0 offen")
        a("s_nop 1")
    a("s_waitcnt vmcnt(0)")

def conv_body(a):
    a(f"s_movk_i32 s27, {KR_PITCH}")
    a("s_mul_i32 s27, s27, s24")
    a("s_add_u32 s27, s27, 0x%x"%WS_KR)
    a("s_lshl_b32 s28, s24, 12")
    a("v_lshrrev_b32 v1, 6, v0")
    a("v_and_b32 v2, 63, v0")
    a("v_mov_b32 v8, 0\n v_mov_b32 v9, 0\n v_mov_b32 v10, 0\n v_mov_b32 v11, 0")
    a("v_min_u32 v3, 159, v0")
    a("v_lshlrev_b32 v3, 4, v3")
    a(f"ds_write_b128 v3, v[8:11] offset:{U0}")
    a("v_lshlrev_b32 v3, 4, v0")
    a("v_add_u32 v3, s28, v3")
    a("buffer_load_dwordx4 v[12:15], v3, s[12:15], 0 offen")
    for it in range(2):
        a("v_mov_b32 v4, v0" if it==0 else "v_add_u32 v4, 256, v0\n v_min_u32 v4, 0x103, v4")
        a("s_nop 0")
        a(f"v_lshlrev_b32 v{5+it}, 4, v4")
        a(f"v_add_u32 v{5+it}, s27, v{5+it}")
        a(f"v_subrev_u32 v7, 16, v{5+it}")
        a(f"buffer_load_dwordx4 v[{16+8*it}:{19+8*it}], v7, s[12:15], 0 offen")
        a(f"buffer_load_dwordx4 v[{20+8*it}:{23+8*it}], v{5+it}, s[12:15], 0 offen")
    a("v_lshrrev_b32 v3, 2, v0")
    a("v_add_u32 v3, 32, v3")
    a("s_movk_i32 s29, 80")
    a("v_mul_lo_u32 v3, v3, s29")
    a("v_and_b32 v4, 3, v0")
    a("v_lshl_add_u32 v3, v4, 4, v3")
    a("s_waitcnt vmcnt(0)")
    a(f"ds_write_b128 v3, v[12:15] offset:{U0}")
    for it in range(2):
        a("v_mov_b32 v4, v0" if it==0 else "v_add_u32 v4, 256, v0\n v_min_u32 v4, 0x103, v4")
        a("v_cmp_eq_u32 vcc, 0, v4")
        a("s_nop 1")
        for k in range(4): a(f"v_cndmask_b32 v{16+8*it+k}, v{16+8*it+k}, 0, vcc")
        a("v_lshlrev_b32 v4, 4, v4")
        W=[16+8*it+k for k in range(8)]
        for q in range(8):
            for k in range(4):
                e=8-q+2*k
                if e%2==0: a(f"v_mov_b32 v{40+k}, v{W[e//2]}")
                else: a(f"v_alignbit_b32 v{40+k}, v{W[e//2+1]}, v{W[e//2]}, 16")
            a(f"ds_write_b128 v4, v[40:43] offset:{q*CP}")
            a("s_nop 1")
    a("s_waitcnt lgkmcnt(0)")
    a("s_barrier")
    le=a.newlabel("cv_skip")
    a("v_readfirstlane_b32 s30, v1")
    a("s_nop 3")
    a("s_cmp_eq_u32 s30, 3")
    a(f"s_cbranch_scc1 {le}")
    a("v_and_b32 v7, 31, v2\n v_lshrrev_b32 v8, 5, v2")
    a("v_and_b32 v3, 7, v7")
    a(f"v_mul_u32_u24 v3, {CP}, v3")
    a("v_and_b32 v4, 24, v7")
    a("v_lshlrev_b32 v4, 1, v4")
    a("v_sub_u32 v3, v3, v4")
    a("v_lshl_add_u32 v3, v8, 4, v3")
    a("s_lshr_b32 s31, s30, 1")
    a("s_mul_i32 s32, s31, 2048")
    a("s_sub_u32 s32, %d, s32"%(4096-2048))
    a("v_add_u32 v3, s32, v3")
    a("s_min_u32 s33, s30, 1")
    a("s_mul_i32 s33, s33, 32")
    a("s_mul_i32 s34, s31, 32")
    a("s_sub_u32 s33, s33, s34")
    a("v_add_u32 v4, s33, v7")
    a("v_mul_lo_u32 v4, v4, s29")
    a("v_lshl_add_u32 v4, v8, 4, v4")
    for r in range(16): a(f"v_mov_b32 v{64+r}, 0")
    lm=a.newlabel("cv_m"); a("s_cmp_eq_u32 s30, 2"); a(f"s_cbranch_scc1 {lm}")
    a("ds_read_b128 v[32:35], v3 offset:2080")
    a(f"ds_read_b128 v[36:39], v4 offset:{U0+32*80+32}")
    a("s_waitcnt lgkmcnt(0)")
    a("v_mfma_f32_32x32x16_bf16 v[64:79], v[32:35], v[36:39], v[64:79]")
    a.label(lm)
    for s in range(64):
        if s==63:
            lsk=a.newlabel("cv_l"); a("s_cmp_eq_u32 s30, 2"); a(f"s_cbranch_scc1 {lsk}")
        sg=s//2
        boff=U0+(32-sg)*80 if s%2==0 else U0+(32-sg-1)*80+32
        if s==0:
            for p in range(3):
                bo=U0+(32-p//2)*80 if p%2==0 else U0+(32-p//2-1)*80+32
                a(f"ds_read_b128 v[{32+8*(p%4)}:{35+8*(p%4)}], v3 offset:{32*(64-p)}")
                a(f"ds_read_b128 v[{36+8*(p%4)}:{39+8*(p%4)}], v4 offset:{bo}")
        if s+3<64:
            p=s+3; bo=U0+(32-p//2)*80 if p%2==0 else U0+(32-p//2-1)*80+32
            a(f"ds_read_b128 v[{32+8*(p%4)}:{35+8*(p%4)}], v3 offset:{32*(64-p)}")
            a(f"ds_read_b128 v[{36+8*(p%4)}:{39+8*(p%4)}], v4 offset:{bo}")
        a(f"s_waitcnt lgkmcnt({2*min(3,63-s)})")
        a(f"v_mfma_f32_32x32x16_bf16 v[64:79], v[{32+8*(s%4)}:{35+8*(s%4)}], v[{36+8*(s%4)}:{39+8*(s%4)}], v[64:79]")
    a.label(lsk)
    a("s_waitcnt lgkmcnt(0)")
    a("s_nop 7\n s_nop 7")
    a("v_lshlrev_b32 v5, 7, v7")
    a("v_lshl_add_u32 v5, v8, 4, v5")
    a("v_lshl_add_u32 v5, v1, 12, v5")
    for q in range(4): a(f"ds_write_b128 v5, v[{64+4*q}:{67+4*q}] offset:{RED+32*q}")
    a.label(le)
    a("s_waitcnt lgkmcnt(0)")
    a("s_barrier")
    a("s_load_dwordx2 s[4:5], s[0:1], 64")
    a("s_lshl_b32 s6, s24, 1")
    a("v_mov_b32 v9, s6")
    a("s_waitcnt lgkmcnt(0)")
    a("global_load_ushort v9, v9, s[4:5]")
    a("v_lshlrev_b32 v3, 5, v0")
    a("v_cmp_lt_u32 vcc, 0x7f, v0")
    a("v_mov_b32 v6, 0x1000")
    a("s_nop 1")
    a("v_cndmask_b32 v6, 0, v6, vcc")
    a(f"ds_read_b128 v[16:19], v3 offset:{RED}")
    a(f"ds_read_b128 v[20:23], v3 offset:{RED+16}")
    a("v_add_u32 v7, v3, v6")
    a(f"ds_read_b128 v[24:27], v7 offset:{RED}")
    a(f"ds_read_b128 v[28:31], v7 offset:{RED+16}")
    a("v_lshrrev_b32 v4, 2, v0")
    a("v_add_u32 v4, 32, v4")
    a("v_mul_lo_u32 v4, v4, s29")
    a("v_and_b32 v5, 3, v0")
    a("v_lshl_add_u32 v4, v5, 4, v4")
    a(f"ds_read_b128 v[12:15], v4 offset:{U0}")
    a("v_cndmask_b32 v8, 0, 1.0, vcc")
    a("s_waitcnt vmcnt(0) lgkmcnt(0)")
    a("v_lshlrev_b32 v9, 16, v9")
    for e in range(8):
        a(f"v_fma_f32 v{16+e}, v{24+e}, v8, v{16+e}")
        rbf(a,16+e)
        a(f"v_lshlrev_b32 v10, 16, v{12+e//2}" if e%2==0 else f"v_and_b32 v10, 0xffff0000, v{12+e//2}")
        a("v_mul_f32 v10, v10, v9")
        rbf(a,10)
        a(f"v_add_f32 v{16+e}, v{16+e}, v10")
    for k in range(4): a(f"v_cvt_pk_bf16_f32 v{40+k}, v{16+2*k}, v{17+2*k}")
    a("v_lshlrev_b32 v3, 4, v0")
    a("v_add_u32 v3, s28, v3")
    a("v_add_u32 v3, 0x%x, v3"%WS_YA)
    a("buffer_store_dwordx4 v[40:43], v3, s[12:15], 0 offen")
    a("s_waitcnt vmcnt(0)")

def prolog(a,name,n):
    a.raw(f".globl {name}\n.p2align 8\n.type {name},@function")
    a.label(name)
    le=a.newlabel("end")
    a(f"s_cmp_ge_u32 s2, {n}")
    a(f"s_cbranch_scc1 {le}")
    a("s_load_dwordx2 s[6:7], s[0:1], 128")
    a("s_waitcnt lgkmcnt(0)")
    srd(a,12,6,WS_SIZE)
    return le
def gen_k2(a):
    le=prolog(a,"k2_kernel",K2_WGS); lc=a.newlabel("conv")
    a(f"s_cmp_ge_u32 s2, {N_G1}")
    a(f"s_cbranch_scc1 {lc}")
    a("s_lshr_b32 s44, s2, 4\n s_lshl_b32 s44, s44, 7")
    a("s_and_b32 s45, s2, 15\n s_lshl_b32 s45, s45, 7")
    gemm_body(a,128,128,512,WS_W1T,1024,WS_Y2,1024,44,45,3,epi1)
    a("s_endpgm")
    a.label(lc)
    a(f"s_sub_u32 s24, s2, {N_G1}")
    conv_body(a)
    a.label(le); a("s_endpgm")
def gen_k3(a):
    le=prolog(a,"k3_kernel",256)
    a("s_lshr_b32 s44, s2, 5\n s_lshl_b32 s44, s44, 6")
    a("s_and_b32 s45, s2, 31\n s_lshl_b32 s45, s45, 6")
    gemm_body(a,64,64,1792,WS_W2T,3584,WS_H,3584,44,45,4,epi2)
    a.label(le); a("s_endpgm")
```

```python
from asmlib import *
from k1 import *
from gemm import *
N_G1=448; N_CONV=512; K2_WGS=N_G1+N_CONV
CP=4160; U0=8*CP; RED=U0+7680
def epi1(a,TN,TM):
    a("s_load_dwordx2 s[4:5], s[0:1], 88")
    a("s_waitcnt lgkmcnt(0)")
    srd(a,16,4,3584)
    for tn in range(TN):
        for tm in range(TM):
            c=64+16*(tn*TM+tm)
            for q in range(4):
                a("v_lshlrev_b32 v12, 6, v10")
                a("v_lshl_add_u32 v12, v8, 2, v12")
                a(f"v_add_u32 v12, s44, v12")
                a(f"v_add_u32 v12, {tn*32+8*q}, v12")
                a("v_lshlrev_b32 v13, 1, v12")
                a("buffer_load_dwordx2 v[14:15], v13, s[16:19], 0 offen")
                a("v_lshlrev_b32 v30, 5, v11")
                a("v_add_u32 v30, v30, v7")
                a(f"v_add_u32 v30, s45, v30")
                a(f"v_add_u32 v30, {tm*32}, v30")
                a("s_movk_i32 s41, 3584")
                a("v_mul_lo_u32 v30, v30, s41")
                a("v_add_u32 v30, v30, v13")
                a("v_add_u32 v30, 0x%x, v30"%WS_H)
                a("s_waitcnt vmcnt(0)")
                for r in range(4):
                    v=c+4*q+r
                    rbf(a,v)
                    a(f"v_lshlrev_b32 v31, 16, v{14+r//2}" if r%2==0 else f"v_and_b32 v31, 0xffff0000, v{14+r//2}")
                    a(f"v_add_f32 v{v}, v{v}, v31")
                    rbf(a,v)
                    gelu(a,v,31,29)
                a(f"v_cvt_pk_bf16_f32 v32, v{c+4*q}, v{c+4*q+1}")
                a(f"v_cvt_pk_bf16_f32 v33, v{c+4*q+2}, v{c+4*q+3}")
                a("buffer_store_dwordx2 v[32:33], v30, s[12:15], 0 offen")
                a("s_nop 1")
    a("s_waitcnt vmcnt(0)")
def epi2(a,TN,TM):
    a("s_load_dwordx2 s[4:5], s[0:1], 104")
    a("s_load_dwordx2 s[6:7], s[0:1], 0")
    a("s_load_dwordx2 s[20:21], s[0:1], 112")
    a("s_waitcnt lgkmcnt(0)")
    srd(a,16,4,1024); srd(a,24,6,0x200000); srd(a,28,20,0x200000)
    c=64
    for q in range(4):
        a("v_lshlrev_b32 v12, 5, v10")
        a("v_lshl_add_u32 v12, v8, 2, v12")
        a("v_add_u32 v12, s44, v12")
        a(f"v_add_u32 v12, {8*q}, v12")
        a("v_lshlrev_b32 v13, 1, v12")
        a("buffer_load_dwordx2 v[14:15], v13, s[16:19], 0 offen")
        a("v_lshlrev_b32 v30, 5, v11")
        a("v_add_u32 v30, v30, v7")
        a("v_add_u32 v30, s45, v30")
        a("v_lshl_add_u32 v31, v30, 10, v13")
        a("buffer_load_dwordx2 v[34:35], v31, s[24:27], 0 offen")
        a("v_lshlrev_b32 v36, 12, v12")
        a("v_lshl_add_u32 v36, v30, 1, v36")
        a("v_add_u32 v36, 0x%x, v36"%WS_YA)
        for r in range(4):
            a(f"v_add_u32 v37, {4096*r}, v36")
            a(f"buffer_load_ushort v{40+r}, v37, s[12:15], 0 offen")
        a("s_waitcnt vmcnt(0)")
        for r in range(4):
            v=c+4*q+r
            rbf(a,v)
            a(f"v_lshlrev_b32 v38, 16, v{14+r//2}" if r%2==0 else f"v_and_b32 v38, 0xffff0000, v{14+r//2}")
            a(f"v_add_f32 v{v}, v{v}, v38")
            rbf(a,v)
            a(f"v_lshlrev_b32 v38, 16, v{34+r//2}" if r%2==0 else f"v_and_b32 v38, 0xffff0000, v{34+r//2}")
            a(f"v_lshlrev_b32 v39, 16, v{40+r}")
            a("v_add_f32 v38, v38, v39")
            rbf(a,38)
            a(f"v_add_f32 v{v}, v{v}, v38")
        a(f"v_cvt_pk_bf16_f32 v32, v{c+4*q}, v{c+4*q+1}")
        a(f"v_cvt_pk_bf16_f32 v33, v{c+4*q+2}, v{c+4*q+3}")
        a("buffer_store_dwordx2 v[32:33], v31, s[28:31], 0 offen")
        a("s_nop 1")
    a("s_waitcnt vmcnt(0)")

def conv_body(a):
    a(f"s_movk_i32 s27, {KR_PITCH}")
    a("s_mul_i32 s27, s27, s24")
    a("s_add_u32 s27, s27, 0x%x"%WS_KR)
    a("s_lshl_b32 s28, s24, 12")
    a("v_lshrrev_b32 v1, 6, v0")
    a("v_and_b32 v2, 63, v0")
    a("v_mov_b32 v8, 0\n v_mov_b32 v9, 0\n v_mov_b32 v10, 0\n v_mov_b32 v11, 0")
    a("v_min_u32 v3, 159, v0")
    a("v_lshlrev_b32 v3, 4, v3")
    a(f"ds_write_b128 v3, v[8:11] offset:{U0}")
    a("v_lshlrev_b32 v3, 4, v0")
    a("v_add_u32 v3, s28, v3")
    a("buffer_load_dwordx4 v[12:15], v3, s[12:15], 0 offen")
    for it in range(2):
        a("v_mov_b32 v4, v0" if it==0 else "v_add_u32 v4, 256, v0\n v_min_u32 v4, 0x103, v4")
        a("s_nop 0")
        a(f"v_lshlrev_b32 v{5+it}, 4, v4")
        a(f"v_add_u32 v{5+it}, s27, v{5+it}")
        a(f"v_subrev_u32 v7, 16, v{5+it}")
        a(f"buffer_load_dwordx4 v[{16+8*it}:{19+8*it}], v7, s[12:15], 0 offen")
        a(f"buffer_load_dwordx4 v[{20+8*it}:{23+8*it}], v{5+it}, s[12:15], 0 offen")
    a("v_lshrrev_b32 v3, 2, v0")
    a("v_add_u32 v3, 32, v3")
    a("s_movk_i32 s29, 80")
    a("v_mul_lo_u32 v3, v3, s29")
    a("v_and_b32 v4, 3, v0")
    a("v_lshl_add_u32 v3, v4, 4, v3")
    a("s_waitcnt vmcnt(0)")
    a(f"ds_write_b128 v3, v[12:15] offset:{U0}")
    for it in range(2):
        a("v_mov_b32 v4, v0" if it==0 else "v_add_u32 v4, 256, v0\n v_min_u32 v4, 0x103, v4")
        a("v_cmp_eq_u32 vcc, 0, v4")
        a("s_nop 1")
        for k in range(4): a(f"v_cndmask_b32 v{16+8*it+k}, v{16+8*it+k}, 0, vcc")
        a("v_lshlrev_b32 v4, 4, v4")
        W=[16+8*it+k for k in range(8)]
        for q in range(8):
            for k in range(4):
                e=8-q+2*k
                if e%2==0: a(f"v_mov_b32 v{40+k}, v{W[e//2]}")
                else: a(f"v_alignbit_b32 v{40+k}, v{W[e//2+1]}, v{W[e//2]}, 16")
            a(f"ds_write_b128 v4, v[40:43] offset:{q*CP}")
            a("s_nop 1")
    a("s_waitcnt lgkmcnt(0)")
    a("s_barrier")
    le=a.newlabel("cv_skip")
    a("v_readfirstlane_b32 s30, v1")
    a("s_nop 3")
    a("s_cmp_eq_u32 s30, 3")
    a(f"s_cbranch_scc1 {le}")
    a("v_and_b32 v7, 31, v2\n v_lshrrev_b32 v8, 5, v2")
    a("v_and_b32 v3, 7, v7")
    a(f"v_mul_u32_u24 v3, {CP}, v3")
    a("v_and_b32 v4, 24, v7")
    a("v_lshlrev_b32 v4, 1, v4")
    a("v_sub_u32 v3, v3, v4")
    a("v_lshl_add_u32 v3, v8, 4, v3")
    a("s_lshr_b32 s31, s30, 1")
    a("s_mul_i32 s32, s31, 2048")
    a("s_sub_u32 s32, %d, s32"%(4096-2048))
    a("v_add_u32 v3, s32, v3")
    a("s_min_u32 s33, s30, 1")
    a("s_mul_i32 s33, s33, 32")
    a("s_mul_i32 s34, s31, 32")
    a("s_sub_u32 s33, s33, s34")
    a("v_add_u32 v4, s33, v7")
    a("v_mul_lo_u32 v4, v4, s29")
    a("v_lshl_add_u32 v4, v8, 4, v4")
    for r in range(16): a(f"v_mov_b32 v{64+r}, 0")
    lm=a.newlabel("cv_m"); a("s_cmp_eq_u32 s30, 2"); a(f"s_cbranch_scc1 {lm}")
    a("ds_read_b128 v[32:35], v3 offset:2080")
    a(f"ds_read_b128 v[36:39], v4 offset:{U0+32*80+32}")
    a("s_waitcnt lgkmcnt(0)")
    a("v_mfma_f32_32x32x16_bf16 v[64:79], v[32:35], v[36:39], v[64:79]")
    a.label(lm)
    for s in range(64):
        if s==63:
            lsk=a.newlabel("cv_l"); a("s_cmp_eq_u32 s30, 2"); a(f"s_cbranch_scc1 {lsk}")
        sg=s//2
        boff=U0+(32-sg)*80 if s%2==0 else U0+(32-sg-1)*80+32
        if s==0:
            for p in range(3):
                bo=U0+(32-p//2)*80 if p%2==0 else U0+(32-p//2-1)*80+32
                a(f"ds_read_b128 v[{32+8*(p%4)}:{35+8*(p%4)}], v3 offset:{32*(64-p)}")
                a(f"ds_read_b128 v[{36+8*(p%4)}:{39+8*(p%4)}], v4 offset:{bo}")
        if s+3<64:
            p=s+3; bo=U0+(32-p//2)*80 if p%2==0 else U0+(32-p//2-1)*80+32
            a(f"ds_read_b128 v[{32+8*(p%4)}:{35+8*(p%4)}], v3 offset:{32*(64-p)}")
            a(f"ds_read_b128 v[{36+8*(p%4)}:{39+8*(p%4)}], v4 offset:{bo}")
        a(f"s_waitcnt lgkmcnt({2*min(3,63-s)})")
        a(f"v_mfma_f32_32x32x16_bf16 v[64:79], v[{32+8*(s%4)}:{35+8*(s%4)}], v[{36+8*(s%4)}:{39+8*(s%4)}], v[64:79]")
    a.label(lsk)
    a("s_waitcnt lgkmcnt(0)")
    a("s_nop 7\n s_nop 7")
    a("v_lshlrev_b32 v5, 7, v7")
    a("v_lshl_add_u32 v5, v8, 4, v5")
    a("v_lshl_add_u32 v5, v1, 12, v5")
    for q in range(4): a(f"ds_write_b128 v5, v[{64+4*q}:{67+4*q}] offset:{RED+32*q}")
    a.label(le)
    a("s_waitcnt lgkmcnt(0)")
    a("s_barrier")
    a("s_load_dwordx2 s[4:5], s[0:1], 64")
    a("s_lshl_b32 s6, s24, 1")
    a("v_mov_b32 v9, s6")
    a("s_waitcnt lgkmcnt(0)")
    a("global_load_ushort v9, v9, s[4:5]")
    a("v_lshlrev_b32 v3, 5, v0")
    a("v_cmp_lt_u32 vcc, 0x7f, v0")
    a("v_mov_b32 v6, 0x1000")
    a("s_nop 1")
    a("v_cndmask_b32 v6, 0, v6, vcc")
    a(f"ds_read_b128 v[16:19], v3 offset:{RED}")
    a(f"ds_read_b128 v[20:23], v3 offset:{RED+16}")
    a("v_add_u32 v7, v3, v6")
    a(f"ds_read_b128 v[24:27], v7 offset:{RED}")
    a(f"ds_read_b128 v[28:31], v7 offset:{RED+16}")
    a("v_lshrrev_b32 v4, 2, v0")
    a("v_add_u32 v4, 32, v4")
    a("v_mul_lo_u32 v4, v4, s29")
    a("v_and_b32 v5, 3, v0")
    a("v_lshl_add_u32 v4, v5, 4, v4")
    a(f"ds_read_b128 v[12:15], v4 offset:{U0}")
    a("v_cndmask_b32 v8, 0, 1.0, vcc")
    a("s_waitcnt vmcnt(0) lgkmcnt(0)")
    a("v_lshlrev_b32 v9, 16, v9")
    for e in range(8):
        a(f"v_fma_f32 v{16+e}, v{24+e}, v8, v{16+e}")
        rbf(a,16+e)
        a(f"v_lshlrev_b32 v10, 16, v{12+e//2}" if e%2==0 else f"v_and_b32 v10, 0xffff0000, v{12+e//2}")
        a("v_mul_f32 v10, v10, v9")
        rbf(a,10)
        a(f"v_add_f32 v{16+e}, v{16+e}, v10")
    for k in range(4): a(f"v_cvt_pk_bf16_f32 v{40+k}, v{16+2*k}, v{17+2*k}")
    a("v_lshlrev_b32 v3, 4, v0")
    a("v_add_u32 v3, s28, v3")
    a("v_add_u32 v3, 0x%x, v3"%WS_YA)
    a("buffer_store_dwordx4 v[40:43], v3, s[12:15], 0 offen")
    a("s_waitcnt vmcnt(0)")

def prolog(a,name,n):
    a.raw(f".globl {name}\n.p2align 8\n.type {name},@function")
    a.label(name)
    le=a.newlabel("end")
    a(f"s_cmp_ge_u32 s2, {n}")
    a(f"s_cbranch_scc1 {le}")
    a("s_load_dwordx2 s[6:7], s[0:1], 128")
    a("s_waitcnt lgkmcnt(0)")
    srd(a,12,6,WS_SIZE)
    return le
def gen_k2(a):
    le=prolog(a,"k2_kernel",K2_WGS); lc=a.newlabel("conv")
    a(f"s_cmp_ge_u32 s2, {N_G1}")
    a(f"s_cbranch_scc1 {lc}")
    a("s_lshr_b32 s44, s2, 5\n s_lshl_b32 s44, s44, 7")
    a("s_and_b32 s45, s2, 31\n s_lshl_b32 s45, s45, 6")
    gemm_body(a,128,64,512,WS_W1T,1024,WS_Y2,1024,44,45,2,epi1)
    a("s_endpgm")
    a.label(lc)
    a(f"s_sub_u32 s24, s2, {N_G1}")
    conv_body(a)
    a.label(le); a("s_endpgm")
def gen_k3(a):
    le=prolog(a,"k3_kernel",256)
    a("s_lshr_b32 s44, s2, 5\n s_lshl_b32 s44, s44, 6")
    a("s_and_b32 s45, s2, 31\n s_lshl_b32 s45, s45, 6")
    gemm_body(a,64,64,1792,WS_W2T,3584,WS_H,3584,44,45,4,epi2)
    a.label(le); a("s_endpgm")
```

```python
from asmlib import *
WS_XNT=0x0; WS_Y2=0x200000; WS_KR=0x400000; KR_PITCH=4160; WS_W1T=0x620000; WS_W2T=0x7E0000; WS_H=0x9A0000; WS_YA=0x10A0000
WS_SIZE=0x10000000
N_LN=256; N_KG=512; N_TR=448
K1_WGS=N_LN+N_KG+N_TR

def wave_sum(a, v):
    for sh in (1,2,4,8):
        a("s_nop 1")
        a(f"v_add_f32_dpp v{v}, v{v}, v{v} row_shr:{sh} row_mask:0xf bank_mask:0xf bound_ctrl:0")
    a("s_nop 1")
    a(f"v_add_f32_dpp v{v}, v{v}, v{v} row_bcast:15 row_mask:0xa bank_mask:0xf")
    a("s_nop 1")
    a(f"v_add_f32_dpp v{v}, v{v}, v{v} row_bcast:31 row_mask:0xc bank_mask:0xf")

def rbf(a, v):
    a(f"v_cvt_pk_bf16_f32 v{v}, v{v}, v{v}")
    a(f"v_lshlrev_b32 v{v}, 16, v{v}")

def ln_pass(a, xv, out, sM, t0):
    s=t0; q=t0+1; r=t0+2; u=t0+3
    a(f"v_add_f32 v{s}, v{xv[0]}, v{xv[1]}")
    for k in range(2,8): a(f"v_add_f32 v{s}, v{s}, v{xv[k]}")
    wave_sum(a, s)
    a("s_nop 1")
    a(f"v_readlane_b32 s{sM}, v{s}, 63")
    a("s_nop 3")
    a(f"v_mov_b32 v{s}, s{sM}")
    a(f"v_mul_f32 v{s}, 0x3b000000, v{s}")
    a(f"v_sub_f32 v{q}, v{xv[0]}, v{s}")
    a(f"v_mul_f32 v{r}, v{q}, v{q}")
    for k in range(1,8):
        a(f"v_sub_f32 v{q}, v{xv[k]}, v{s}")
        a(f"v_fmac_f32 v{r}, v{q}, v{q}")
    wave_sum(a, r)
    a("s_nop 1")
    a(f"v_readlane_b32 s{sM}, v{r}, 63")
    a("s_nop 3")
    a(f"v_mov_b32 v{r}, s{sM}")
    a(f"v_mul_f32 v{r}, 0x3b000000, v{r}")
    rbf(a, r)
    a(f"v_add_f32 v{r}, 0x3727c5ac, v{r}")
    rbf(a, r)
    a(f"v_sqrt_f32 v{r}, v{r}")
    a("s_nop 0")
    rbf(a, r)
    a(f"v_rcp_f32 v{u}, v{r}")
    a("s_nop 0")
    a(f"v_fma_f32 v{q}, -v{r}, v{u}, 1.0")
    a(f"v_fma_f32 v{u}, v{q}, v{u}, v{u}")
    rbf(a, s)
    for k in range(8):
        a(f"v_sub_f32 v{q}, v{xv[k]}, v{s}")
        rbf(a, q)
        a(f"v_mul_f32 v{out[k]}, v{q}, v{u}")
        a(f"v_fma_f32 v{q}, -v{r}, v{out[k]}, v{q}")
        a(f"v_fma_f32 v{out[k]}, v{q}, v{u}, v{out[k]}")
        rbf(a, out[k])

def gen_ln_body(a):
    a("v_lshrrev_b32 v1, 6, v0")
    a("v_and_b32 v2, 63, v0")
    a("s_lshl_b32 s3, s2, 3")
    a("v_lshlrev_b32 v3, 1, v1")
    a("v_add_u32 v3, s3, v3")
    a("v_lshlrev_b32 v4, 10, v3")
    a("v_lshl_add_u32 v4, v2, 4, v4")
    for i in range(2):
        a(f"v_add_u32 v9, {1024*i}, v4")
        a(f"buffer_load_dwordx4 v[{16+4*i}:{19+4*i}], v9, s[8:11], 0 offen")
    a("v_lshlrev_b32 v5, 1, v1")
    a("s_movk_i32 s4, 1040")
    a("v_mul_lo_u32 v5, v5, s4")
    a("v_lshl_add_u32 v5, v2, 4, v5")
    a("v_add_u32 v6, 0x%x, v4" % WS_Y2)
    a("s_waitcnt vmcnt(0)")
    X=list(range(48,56)); XN=list(range(56,64)); Y2=list(range(64,72))
    for i in range(2):
        for k in range(4):
            a(f"v_lshlrev_b32 v{X[2*k]}, 16, v{16+4*i+k}")
            a(f"v_and_b32 v{X[2*k+1]}, 0xffff0000, v{16+4*i+k}")
        ln_pass(a, X, XN, 20, 72)
        ln_pass(a, XN, Y2, 20, 72)
        for k in range(4):
            a(f"v_cvt_pk_bf16_f32 v{76+k}, v{XN[2*k]}, v{XN[2*k+1]}")
            a(f"v_cvt_pk_bf16_f32 v{80+k}, v{Y2[2*k]}, v{Y2[2*k+1]}")
        a(f"ds_write_b128 v5, v[76:79] offset:{1040*i}")
        a(f"v_add_u32 v9, {1024*i}, v6")
        a(f"buffer_store_dwordx4 v[80:83], v9, s[12:15], 0 offen")
        a("s_nop 1")
    a("s_waitcnt lgkmcnt(0)")
    a("s_barrier")
    a("v_lshlrev_b32 v7, 1, v0")
    a("v_lshlrev_b32 v8, 12, v0")
    a("s_lshl_b32 s4, s2, 4")
    a("v_add_u32 v8, s4, v8")
    for c in range(2):
        for g in range(1):
            for j in range(4):
                r0=8*g+2*j
                a(f"ds_read_u16 v{16+j}, v7 offset:{1040*r0+512*c}")
                a(f"ds_read_u16 v{20+j}, v7 offset:{1040*(r0+1)+512*c}")
            a("s_waitcnt lgkmcnt(0)")
            for j in range(4): a(f"v_lshl_or_b32 v{16+j}, v{20+j}, 16, v{16+j}")
            a(f"buffer_store_dwordx4 v[16:19], v8, s[12:15], 0 offen offset:{16*g}")
            a("s_nop 1")
        if c==0: a("v_add_u32 v8, 0x100000, v8")
    a("s_waitcnt vmcnt(0)")

KG_P0=2048
def gen_kgen_body(a):
    a("s_load_dwordx16 s[48:63], s[0:1], 8")
    a("v_and_b32 v1, 127, v0")
    a("s_lshl_b32 s25, s24, 8")
    a("v_lshl_add_u32 v2, v1, 1, s25")
    a("s_lshl_b32 s26, s24, 1")
    a("v_mov_b32 v3, s26")
    a("s_waitcnt lgkmcnt(0)")
    for k in range(6):
        a(f"global_load_ushort v{10+k}, v2, s[{48+2*k}:{49+2*k}]")
    a("global_load_ushort v16, v3, s[60:61]")
    a("s_waitcnt vmcnt(0)")
    for k in range(7): a(f"v_lshlrev_b32 v{10+k}, 16, v{10+k}")
    a("v_mul_f32 v16, 0x3fb8aa3b, v16")
    a("v_exp_f32 v16, v16")
    a("s_nop 0")
    rbf(a,16)
    a("v_mul_f32 v20, v10, v16")
    a("v_mul_f32 v20, 0x3fb8aa3b, v20")
    a("v_mul_f32 v21, v11, v16")
    a("v_mul_f32 v21, 0.15915494, v21")
    a("v_mul_f32 v12, v12, v16")
    a("v_mul_f32 v13, v13, v16")
    a("v_mul_f32 v22, v14, v12")
    a("v_fma_f32 v22, -v15, v13, v22")
    a("v_mul_f32 v23, v14, v13")
    a("v_fma_f32 v23, v15, v12, v23")
    a("v_lshlrev_b32 v4, 4, v1")
    a("ds_write_b128 v4, v[20:23]")
    a("s_waitcnt lgkmcnt(0)")
    a("s_barrier")
    a("v_lshrrev_b32 v1, 6, v0")
    a("v_and_b32 v2, 15, v0")
    a("v_bfe_u32 v3, v0, 4, 2")
    a("v_cvt_f32_u32 v4, v2")
    a("v_mul_f32 v5, 0x41800000, v4")
    a("v_mul_f32 v6, 0x42000000, v4")
    a("v_add_f32 v6, 0x43800000, v6")
    a("v_lshlrev_b32 v7, 9, v1")
    a("v_lshl_add_u32 v7, v3, 4, v7")
    for r in range(16): a(f"v_mov_b32 v{64+r}, 0")
    def cexp(e, dre, dim):
        a(f"v_mul_f32 v30, v8, v{e}")
        a(f"v_mul_f32 v31, v9, v{e}")
        a("v_fract_f32 v31, v31")
        a("v_exp_f32 v30, v30")
        a(f"v_cos_f32 v{dre}, v31")
        a(f"v_sin_f32 v{dim}, v31")
        a("s_nop 0")
        a(f"v_mul_f32 v{dre}, v{dre}, v30")
        a(f"v_mul_f32 v{dim}, v{dim}, v30")
    def csq(sre, sim, dre, dim):
        a(f"v_mul_f32 v{dre}, v{sre}, v{sre}")
        a(f"v_fma_f32 v{dre}, -v{sim}, v{sim}, v{dre}")
        a(f"v_mul_f32 v{dim}, v{sre}, v{sim}")
        a(f"v_add_f32 v{dim}, v{dim}, v{dim}")
    for pp in range(8):
        a(f"ds_read_b128 v[8:11], v7 offset:{64*pp}")
        a("s_waitcnt lgkmcnt(0)")
        cexp(4, 32, 33)
        csq(32,33,34,35); csq(34,35,36,37); csq(36,37,38,39)
        cexp(5, 40, 41)
        cexp(6, 42, 43)
        csq(42,43,44,45); csq(44,45,46,47)
        for s in range(4):
            w=40+2*s; z=32+2*s
            a(f"v_mul_f32 v48, v10, v{w}")
            a(f"v_fma_f32 v48, -v11, v{w+1}, v48")
            a(f"v_mul_f32 v49, v10, v{w+1}")
            a(f"v_fma_f32 v49, v11, v{w}, v49")
            a(f"v_sub_f32 v50, 0, v{z+1}")
            a("s_nop 1")
            a(f"v_mfma_f32_16x16x4_f32 v[{64+4*s}:{67+4*s}], v48, v{z}, v[{64+4*s}:{67+4*s}]")
            a(f"v_mfma_f32_16x16x4_f32 v[{64+4*s}:{67+4*s}], v49, v50, v[{64+4*s}:{67+4*s}]")
    a("s_nop 7\n s_nop 7")
    a("v_lshlrev_b32 v7, 12, v1")
    a("v_lshl_add_u32 v7, v3, 8, v7")
    a("v_lshl_add_u32 v7, v2, 2, v7")
    for s in range(4):
        for r in range(4):
            a(f"ds_write_b32 v7, v{64+4*s+r} offset:{KG_P0+1024*s+64*r}")
    a("s_waitcnt lgkmcnt(0)")
    a("s_barrier")
    a(f"s_movk_i32 s27, {KR_PITCH}")
    a("s_mul_i32 s27, s27, s24")
    a("s_add_u32 s27, s27, 0x%x" % WS_KR)
    for it in range(2):
        a("v_mov_b32 v1, v0" if it==0 else "v_add_u32 v1, 256, v0\n v_min_u32 v1, 0x103, v1")
        for e in range(8):
            a(f"v_lshlrev_b32 v2, 3, v1")
            a(f"v_sub_u32 v2, {2048-e}, v2")
            a("v_or_b32 v3, 1, v2")
            a("v_ffbh_u32 v3, v3")
            a("v_sub_u32 v3, 24, v3")
            a("v_max_i32 v3, 0, v3")
            a("v_lshlrev_b32 v4, v3, 1")
            a("v_lshrrev_b32 v4, 1, v4")
            a("v_lshrrev_b32 v5, v3, v2")
            a("v_and_b32 v5, 1, v5")
            a("v_add3_u32 v4, v4, v5, -1")
            a("v_max_i32 v4, 0, v4")
            a("v_add_u32 v4, v4, v2")
            a("v_lshrrev_b32 v4, v3, v4")
            a("v_lshlrev_b32 v5, 8, v3")
            a("v_subrev_u32 v5, 128, v5")
            a("v_max_i32 v5, 0, v5")
            a("v_add_u32 v4, v4, v5")
            a("v_min_u32 v4, 0x3ff, v4")
            a("v_lshlrev_b32 v4, 2, v4")
            for w in range(4):
                a(f"ds_read_b32 v{20+w}, v4 offset:{KG_P0+4096*w}")
            a("s_waitcnt lgkmcnt(0)")
            a("v_add_f32 v20, v20, v21")
            a("v_add_f32 v22, v22, v23")
            a("v_add_f32 v20, v20, v22")
            a("v_cmp_gt_u32 vcc, 0x800, v2")
            a("s_nop 1")
            a(f"v_cndmask_b32 v{8+e}, 0, v20, vcc")
        for k in range(4): a(f"v_cvt_pk_bf16_f32 v{24+k}, v{8+2*k}, v{9+2*k}")
        a("v_lshlrev_b32 v2, 4, v1")
        a("v_add_u32 v2, s27, v2")
        a("buffer_store_dwordx4 v[24:27], v2, s[12:15], 0 offen")
        a("s_nop 1")
    a("s_waitcnt vmcnt(0)")

def gen_tr_body(a):
    l2=a.newlabel("tr_w2"); lj=a.newlabel("tr_j")
    a("s_cmp_ge_u32 s24, 224")
    a(f"s_cbranch_scc1 {l2}")
    a("s_load_dwordx2 s[4:5], s[0:1], 80")
    a("s_mov_b32 s28, 1792")
    a("s_mov_b32 s29, 512")
    a("s_mul_hi_u32 s30, s24, 0x924924A")
    a("s_mul_i32 s31, s30, 28")
    a("s_sub_u32 s31, s24, s31")
    a("s_mov_b32 s32, 0x%x" % WS_W1T)
    a(f"s_branch {lj}")
    a.label(l2)
    a("s_load_dwordx2 s[4:5], s[0:1], 96")
    a("s_mov_b32 s28, 512")
    a("s_mov_b32 s29, 1792")
    a("s_sub_u32 s33, s24, 224")
    a("s_lshr_b32 s30, s33, 3")
    a("s_and_b32 s31, s33, 7")
    a("s_mov_b32 s32, 0x%x" % WS_W2T)
    a.label(lj)
    a("s_waitcnt lgkmcnt(0)")
    srd(a, 16, 4, 0x1C0000)
    a("v_lshrrev_b32 v1, 2, v0")
    a("v_and_b32 v2, 3, v0")
    a("s_lshl_b32 s33, s30, 6")
    a("v_add_u32 v3, s33, v1")
    a("v_mul_lo_u32 v3, v3, s28")
    a("s_lshl_b32 s34, s31, 6")
    a("v_add_u32 v3, s34, v3")
    a("v_lshlrev_b32 v3, 1, v3")
    a("v_lshl_add_u32 v3, v2, 5, v3")
    a("buffer_load_dwordx4 v[8:11], v3, s[16:19], 0 offen")
    a("buffer_load_dwordx4 v[12:15], v3, s[16:19], 0 offen offset:16")
    a("s_movk_i32 s35, 144")
    a("v_mul_lo_u32 v4, v1, s35")
    a("v_lshl_add_u32 v4, v2, 5, v4")
    a("s_waitcnt vmcnt(0)")
    a("ds_write_b128 v4, v[8:11]")
    a("ds_write_b128 v4, v[12:15] offset:16")
    a("s_waitcnt lgkmcnt(0)")
    a("s_barrier")
    a("v_lshlrev_b32 v5, 1, v1")
    a("s_movk_i32 s35, 2304")
    a("v_mul_lo_u32 v6, v2, s35")
    a("v_add_u32 v5, v5, v6")
    for j in range(8):
        a(f"ds_read_u16 v{8+j}, v5 offset:{144*(2*j)}")
        a(f"ds_read_u16 v{16+j}, v5 offset:{144*(2*j+1)}")
    a("v_add_u32 v3, s34, v1")
    a("v_mul_lo_u32 v3, v3, s29")
    a("v_add_u32 v3, s33, v3")
    a("v_lshlrev_b32 v3, 1, v3")
    a("v_lshl_add_u32 v3, v2, 5, v3")
    a("v_add_u32 v3, s32, v3")
    a("s_waitcnt lgkmcnt(0)")
    for j in range(8): a(f"v_lshl_or_b32 v{8+j}, v{16+j}, 16, v{8+j}")
    a("buffer_store_dwordx4 v[8:11], v3, s[12:15], 0 offen")
    a("buffer_store_dwordx4 v[12:15], v3, s[12:15], 0 offen offset:16")
    a("s_waitcnt vmcnt(0)")

def gen_k1(a, name="k1_kernel"):
    a.raw(f".globl {name}\n.p2align 8\n.type {name},@function")
    a.label(name)
    lk=a.newlabel("k1_kg"); lt=a.newlabel("k1_tr"); le=a.newlabel("k1_end")
    a(f"s_cmp_ge_u32 s2, {K1_WGS}")
    a(f"s_cbranch_scc1 {le}")
    a("s_load_dwordx2 s[4:5], s[0:1], 0")
    a("s_load_dwordx2 s[6:7], s[0:1], 128")
    a("s_waitcnt lgkmcnt(0)")
    srd(a, 8, 4, 0x200000); srd(a, 12, 6, WS_SIZE)
    a(f"s_cmp_ge_u32 s2, {N_LN}")
    a(f"s_cbranch_scc1 {lk}")
    gen_ln_body(a)
    a("s_endpgm")
    a.label(lk)
    a(f"s_sub_u32 s24, s2, {N_LN}")
    a(f"s_cmp_ge_u32 s24, {N_KG}")
    a(f"s_cbranch_scc1 {lt}")
    gen_kgen_body(a)
    a("s_endpgm")
    a.label(lt)
    a(f"s_sub_u32 s24, s24, {N_KG}")
    gen_tr_body(a)
    a.label(le)
    a("s_endpgm")
```

```python
from asmlib import *
WS_XNT=0x0; WS_Y2=0x200000; WS_KR=0x400000; KR_PITCH=4160; WS_W1T=0x620000; WS_W2T=0x7E0000; WS_H=0x9A0000; WS_YA=0x10A0000
WS_SIZE=0x10000000
N_LN=256; N_KG=512; N_TR=448
K1_WGS=N_LN+N_KG+N_TR

def wave_sum(a, v):
    for sh in (1,2,4,8):
        a("s_nop 1")
        a(f"v_add_f32_dpp v{v}, v{v}, v{v} row_shr:{sh} row_mask:0xf bank_mask:0xf bound_ctrl:0")
    a("s_nop 1")
    a(f"v_add_f32_dpp v{v}, v{v}, v{v} row_bcast:15 row_mask:0xa bank_mask:0xf")
    a("s_nop 1")
    a(f"v_add_f32_dpp v{v}, v{v}, v{v} row_bcast:31 row_mask:0xc bank_mask:0xf")

def rbf(a, v):
    a(f"v_cvt_pk_bf16_f32 v{v}, v{v}, v{v}")
    a(f"v_lshlrev_b32 v{v}, 16, v{v}")

def ln_pass(a, xv, out, sM, t0):
    s=t0; q=t0+1; r=t0+2; u=t0+3
    a(f"v_add_f32 v{s}, v{xv[0]}, v{xv[1]}")
    for k in range(2,8): a(f"v_add_f32 v{s}, v{s}, v{xv[k]}")
    wave_sum(a, s)
    a("s_nop 1")
    a(f"v_readlane_b32 s{sM}, v{s}, 63")
    a("s_nop 3")
    a(f"v_mov_b32 v{s}, s{sM}")
    a(f"v_mul_f32 v{s}, 0x3b000000, v{s}")
    a(f"v_sub_f32 v{q}, v{xv[0]}, v{s}")
    a(f"v_mul_f32 v{r}, v{q}, v{q}")
    for k in range(1,8):
        a(f"v_sub_f32 v{q}, v{xv[k]}, v{s}")
        a(f"v_fmac_f32 v{r}, v{q}, v{q}")
    wave_sum(a, r)
    a("s_nop 1")
    a(f"v_readlane_b32 s{sM}, v{r}, 63")
    a("s_nop 3")
    a(f"v_mov_b32 v{r}, s{sM}")
    a(f"v_mul_f32 v{r}, 0x3b000000, v{r}")
    rbf(a, r)
    a(f"v_add_f32 v{r}, 0x3727c5ac, v{r}")
    rbf(a, r)
    a(f"v_sqrt_f32 v{r}, v{r}")
    a("s_nop 0")
    rbf(a, r)
    a(f"v_rcp_f32 v{u}, v{r}")
    a("s_nop 0")
    a(f"v_fma_f32 v{q}, -v{r}, v{u}, 1.0")
    a(f"v_fma_f32 v{u}, v{q}, v{u}, v{u}")
    rbf(a, s)
    for k in range(8):
        a(f"v_sub_f32 v{q}, v{xv[k]}, v{s}")
        rbf(a, q)
        a(f"v_mul_f32 v{out[k]}, v{q}, v{u}")
        a(f"v_fma_f32 v{q}, -v{r}, v{out[k]}, v{q}")
        a(f"v_fma_f32 v{out[k]}, v{q}, v{u}, v{out[k]}")
        rbf(a, out[k])

def gen_ln_body(a):
    a("v_lshrrev_b32 v1, 6, v0")
    a("v_and_b32 v2, 63, v0")
    a("s_lshl_b32 s3, s2, 3")
    a("v_lshlrev_b32 v3, 1, v1")
    a("v_add_u32 v3, s3, v3")
    a("v_lshlrev_b32 v4, 10, v3")
    a("v_lshl_add_u32 v4, v2, 4, v4")
    for i in range(2):
        a(f"v_add_u32 v9, {1024*i}, v4")
        a(f"buffer_load_dwordx4 v[{16+4*i}:{19+4*i}], v9, s[8:11], 0 offen")
    a("v_lshlrev_b32 v5, 1, v1")
    a("s_movk_i32 s4, 1040")
    a("v_mul_lo_u32 v5, v5, s4")
    a("v_lshl_add_u32 v5, v2, 4, v5")
    a("v_add_u32 v6, 0x%x, v4" % WS_Y2)
    a("s_waitcnt vmcnt(0)")
    X=list(range(48,56)); XN=list(range(56,64)); Y2=list(range(64,72))
    for i in range(2):
        for k in range(4):
            a(f"v_lshlrev_b32 v{X[2*k]}, 16, v{16+4*i+k}")
            a(f"v_and_b32 v{X[2*k+1]}, 0xffff0000, v{16+4*i+k}")
        ln_pass(a, X, XN, 20, 72)
        ln_pass(a, XN, Y2, 20, 72)
        for k in range(4):
            a(f"v_cvt_pk_bf16_f32 v{76+k}, v{XN[2*k]}, v{XN[2*k+1]}")
            a(f"v_cvt_pk_bf16_f32 v{80+k}, v{Y2[2*k]}, v{Y2[2*k+1]}")
        a(f"ds_write_b128 v5, v[76:79] offset:{1040*i}")
        a(f"v_add_u32 v9, {1024*i}, v6")
        a(f"buffer_store_dwordx4 v[80:83], v9, s[12:15], 0 offen")
        a("s_nop 1")
    a("s_waitcnt lgkmcnt(0)")
    a("s_barrier")
    a("v_lshlrev_b32 v7, 1, v0")
    a("v_lshlrev_b32 v8, 12, v0")
    a("s_lshl_b32 s4, s2, 4")
    a("v_add_u32 v8, s4, v8")
    for c in range(2):
        for g in range(1):
            for j in range(4):
                r0=8*g+2*j
                a(f"ds_read_u16 v{16+j}, v7 offset:{1040*r0+512*c}")
                a(f"ds_read_u16 v{20+j}, v7 offset:{1040*(r0+1)+512*c}")
            a("s_waitcnt lgkmcnt(0)")
            for j in range(4): a(f"v_lshl_or_b32 v{16+j}, v{20+j}, 16, v{16+j}")
            a(f"buffer_store_dwordx4 v[16:19], v8, s[12:15], 0 offen offset:{16*g}")
            a("s_nop 1")
        if c==0: a("v_add_u32 v8, 0x100000, v8")
    a("s_waitcnt vmcnt(0)")

KG_P0=2048
def gen_kgen_body(a):
    a("s_load_dwordx16 s[48:63], s[0:1], 8")
    a("v_and_b32 v1, 127, v0")
    a("s_lshl_b32 s25, s24, 8")
    a("v_lshl_add_u32 v2, v1, 1, s25")
    a("s_lshl_b32 s26, s24, 1")
    a("v_mov_b32 v3, s26")
    a("s_waitcnt lgkmcnt(0)")
    for k in range(6):
        a(f"global_load_ushort v{10+k}, v2, s[{48+2*k}:{49+2*k}]")
    a("global_load_ushort v16, v3, s[60:61]")
    a("s_waitcnt vmcnt(0)")
    for k in range(7): a(f"v_lshlrev_b32 v{10+k}, 16, v{10+k}")
    a("v_mul_f32 v16, 0x3fb8aa3b, v16")
    a("v_exp_f32 v16, v16")
    a("s_nop 0")
    rbf(a,16)
    a("v_mul_f32 v20, v10, v16")
    a("v_mul_f32 v20, 0x3fb8aa3b, v20")
    a("v_mul_f32 v21, v11, v16")
    a("v_mul_f32 v21, 0.15915494, v21")
    a("v_mul_f32 v12, v12, v16")
    a("v_mul_f32 v13, v13, v16")
    a("v_mul_f32 v22, v14, v12")
    a("v_fma_f32 v22, -v15, v13, v22")
    a("v_mul_f32 v23, v14, v13")
    a("v_fma_f32 v23, v15, v12, v23")
    a("v_lshlrev_b32 v4, 4, v1")
    a("ds_write_b128 v4, v[20:23]")
    a("s_waitcnt lgkmcnt(0)")
    a("s_barrier")
    a("v_lshrrev_b32 v1, 6, v0")
    a("v_and_b32 v2, 15, v0")
    a("v_bfe_u32 v3, v0, 4, 2")
    a("v_cvt_f32_u32 v4, v2")
    a("v_mul_f32 v5, 0x41800000, v4")
    a("v_mul_f32 v6, 0x42000000, v4")
    a("v_add_f32 v6, 0x43800000, v6")
    a("v_lshlrev_b32 v7, 9, v1")
    a("v_lshl_add_u32 v7, v3, 4, v7")
    for r in range(16): a(f"v_mov_b32 v{64+r}, 0")
    def cexp(e, dre, dim):
        a(f"v_mul_f32 v30, v8, v{e}")
        a(f"v_mul_f32 v31, v9, v{e}")
        a("v_fract_f32 v31, v31")
        a("v_exp_f32 v30, v30")
        a(f"v_cos_f32 v{dre}, v31")
        a(f"v_sin_f32 v{dim}, v31")
        a("s_nop 0")
        a(f"v_mul_f32 v{dre}, v{dre}, v30")
        a(f"v_mul_f32 v{dim}, v{dim}, v30")
    def csq(sre, sim, dre, dim):
        a(f"v_mul_f32 v{dre}, v{sre}, v{sre}")
        a(f"v_fma_f32 v{dre}, -v{sim}, v{sim}, v{dre}")
        a(f"v_mul_f32 v{dim}, v{sre}, v{sim}")
        a(f"v_add_f32 v{dim}, v{dim}, v{dim}")
    for pp in range(8):
        if pp==0: a("ds_read_b128 v[52:55], v7")
        a("s_waitcnt lgkmcnt(0)")
        for k in range(4): a(f"v_mov_b32 v{8+k}, v{52+k}")
        if pp<7: a(f"ds_read_b128 v[52:55], v7 offset:{64*pp+64}")
        cexp(4, 32, 33)
        csq(32,33,34,35); csq(34,35,36,37); csq(36,37,38,39)
        cexp(5, 40, 41)
        cexp(6, 42, 43)
        csq(42,43,44,45); csq(44,45,46,47)
        for s in range(4):
            w=40+2*s; z=32+2*s
            a(f"v_mul_f32 v48, v10, v{w}")
            a(f"v_fma_f32 v48, -v11, v{w+1}, v48")
            a(f"v_mul_f32 v49, v10, v{w+1}")
            a(f"v_fma_f32 v49, v11, v{w}, v49")
            a(f"v_sub_f32 v50, 0, v{z+1}")
            a("s_nop 1")
            a(f"v_mfma_f32_16x16x4_f32 v[{64+4*s}:{67+4*s}], v48, v{z}, v[{64+4*s}:{67+4*s}]")
            a(f"v_mfma_f32_16x16x4_f32 v[{64+4*s}:{67+4*s}], v49, v50, v[{64+4*s}:{67+4*s}]")
    a("s_nop 7\n s_nop 7")
    a("v_lshlrev_b32 v7, 12, v1")
    a("v_lshl_add_u32 v7, v3, 8, v7")
    a("v_lshl_add_u32 v7, v2, 2, v7")
    for s in range(4):
        for r in range(4):
            a(f"ds_write_b32 v7, v{64+4*s+r} offset:{KG_P0+1024*s+64*r}")
    a("s_waitcnt lgkmcnt(0)")
    a("s_barrier")
    a(f"s_movk_i32 s27, {KR_PITCH}")
    a("s_mul_i32 s27, s27, s24")
    a("s_add_u32 s27, s27, 0x%x" % WS_KR)
    for it in range(2):
        a("v_mov_b32 v1, v0" if it==0 else "v_add_u32 v1, 256, v0\n v_min_u32 v1, 0x103, v1")
        for e in range(8):
            a(f"v_lshlrev_b32 v2, 3, v1")
            a(f"v_sub_u32 v2, {2048-e}, v2")
            a("v_or_b32 v3, 1, v2")
            a("v_ffbh_u32 v3, v3")
            a("v_sub_u32 v3, 24, v3")
            a("v_max_i32 v3, 0, v3")
            a("v_lshlrev_b32 v4, v3, 1")
            a("v_lshrrev_b32 v4, 1, v4")
            a("v_lshrrev_b32 v5, v3, v2")
            a("v_and_b32 v5, 1, v5")
            a("v_add3_u32 v4, v4, v5, -1")
            a("v_max_i32 v4, 0, v4")
            a("v_add_u32 v4, v4, v2")
            a("v_lshrrev_b32 v4, v3, v4")
            a("v_lshlrev_b32 v5, 8, v3")
            a("v_subrev_u32 v5, 128, v5")
            a("v_max_i32 v5, 0, v5")
            a("v_add_u32 v4, v4, v5")
            a("v_min_u32 v4, 0x3ff, v4")
            a("v_lshlrev_b32 v4, 2, v4")
            for w in range(4):
                a(f"ds_read_b32 v{60+4*e+w}, v4 offset:{KG_P0+4096*w}")
            a(f"v_mov_b32 v{40+e}, v2")
        a("s_waitcnt lgkmcnt(0)")
        for e in range(8):
            a(f"v_add_f32 v20, v{60+4*e}, v{61+4*e}")
            a(f"v_add_f32 v22, v{62+4*e}, v{63+4*e}")
            a("v_add_f32 v20, v20, v22")
            a(f"v_cmp_gt_u32 vcc, 0x800, v{40+e}")
            a("s_nop 1")
            a(f"v_cndmask_b32 v{8+e}, 0, v20, vcc")
        for k in range(4): a(f"v_cvt_pk_bf16_f32 v{24+k}, v{8+2*k}, v{9+2*k}")
        a("v_lshlrev_b32 v2, 4, v1")
        a("v_add_u32 v2, s27, v2")
        a("buffer_store_dwordx4 v[24:27], v2, s[12:15], 0 offen")
        a("s_nop 1")
    a("s_waitcnt vmcnt(0)")

def gen_tr_body(a):
    l2=a.newlabel("tr_w2"); lj=a.newlabel("tr_j")
    a("s_cmp_ge_u32 s24, 224")
    a(f"s_cbranch_scc1 {l2}")
    a("s_load_dwordx2 s[4:5], s[0:1], 80")
    a("s_mov_b32 s28, 1792")
    a("s_mov_b32 s29, 512")
    a("s_mul_hi_u32 s30, s24, 0x924924A")
    a("s_mul_i32 s31, s30, 28")
    a("s_sub_u32 s31, s24, s31")
    a("s_mov_b32 s32, 0x%x" % WS_W1T)
    a(f"s_branch {lj}")
    a.label(l2)
    a("s_load_dwordx2 s[4:5], s[0:1], 96")
    a("s_mov_b32 s28, 512")
    a("s_mov_b32 s29, 1792")
    a("s_sub_u32 s33, s24, 224")
    a("s_lshr_b32 s30, s33, 3")
    a("s_and_b32 s31, s33, 7")
    a("s_mov_b32 s32, 0x%x" % WS_W2T)
    a.label(lj)
    a("s_waitcnt lgkmcnt(0)")
    srd(a, 16, 4, 0x1C0000)
    a("v_lshrrev_b32 v1, 2, v0")
    a("v_and_b32 v2, 3, v0")
    a("s_lshl_b32 s33, s30, 6")
    a("v_add_u32 v3, s33, v1")
    a("v_mul_lo_u32 v3, v3, s28")
    a("s_lshl_b32 s34, s31, 6")
    a("v_add_u32 v3, s34, v3")
    a("v_lshlrev_b32 v3, 1, v3")
    a("v_lshl_add_u32 v3, v2, 5, v3")
    a("buffer_load_dwordx4 v[8:11], v3, s[16:19], 0 offen")
    a("buffer_load_dwordx4 v[12:15], v3, s[16:19], 0 offen offset:16")
    a("s_movk_i32 s35, 144")
    a("v_mul_lo_u32 v4, v1, s35")
    a("v_lshl_add_u32 v4, v2, 5, v4")
    a("s_waitcnt vmcnt(0)")
    a("ds_write_b128 v4, v[8:11]")
    a("ds_write_b128 v4, v[12:15] offset:16")
    a("s_waitcnt lgkmcnt(0)")
    a("s_barrier")
    a("v_lshlrev_b32 v5, 1, v1")
    a("s_movk_i32 s35, 2304")
    a("v_mul_lo_u32 v6, v2, s35")
    a("v_add_u32 v5, v5, v6")
    for j in range(8):
        a(f"ds_read_u16 v{8+j}, v5 offset:{144*(2*j)}")
        a(f"ds_read_u16 v{16+j}, v5 offset:{144*(2*j+1)}")
    a("v_add_u32 v3, s34, v1")
    a("v_mul_lo_u32 v3, v3, s29")
    a("v_add_u32 v3, s33, v3")
    a("v_lshlrev_b32 v3, 1, v3")
    a("v_lshl_add_u32 v3, v2, 5, v3")
    a("v_add_u32 v3, s32, v3")
    a("s_waitcnt lgkmcnt(0)")
    for j in range(8): a(f"v_lshl_or_b32 v{8+j}, v{16+j}, 16, v{8+j}")
    a("buffer_store_dwordx4 v[8:11], v3, s[12:15], 0 offen")
    a("buffer_store_dwordx4 v[12:15], v3, s[12:15], 0 offen offset:16")
    a("s_waitcnt vmcnt(0)")

def gen_k1(a, name="k1_kernel"):
    a.raw(f".globl {name}\n.p2align 8\n.type {name},@function")
    a.label(name)
    lk=a.newlabel("k1_kg"); lt=a.newlabel("k1_tr"); le=a.newlabel("k1_end")
    a(f"s_cmp_ge_u32 s2, {K1_WGS}")
    a(f"s_cbranch_scc1 {le}")
    a("s_load_dwordx2 s[4:5], s[0:1], 0")
    a("s_load_dwordx2 s[6:7], s[0:1], 128")
    a("s_waitcnt lgkmcnt(0)")
    srd(a, 8, 4, 0x200000); srd(a, 12, 6, WS_SIZE)
    a(f"s_cmp_ge_u32 s2, {N_LN}")
    a(f"s_cbranch_scc1 {lk}")
    gen_ln_body(a)
    a("s_endpgm")
    a.label(lk)
    a(f"s_sub_u32 s24, s2, {N_LN}")
    a(f"s_cmp_ge_u32 s24, {N_KG}")
    a(f"s_cbranch_scc1 {lt}")
    gen_kgen_body(a)
    a("s_endpgm")
    a.label(lt)
    a(f"s_sub_u32 s24, s24, {N_KG}")
    gen_tr_body(a)
    a.label(le)
    a("s_endpgm")
```

```python
from asmlib import *
WS_XNT=0x0; WS_Y2=0x200000; WS_KR=0x400000; KR_PITCH=4160; WS_W1T=0x620000; WS_W2T=0x7E0000; WS_H=0x9A0000; WS_YA=0x10A0000
WS_SIZE=0x10000000
N_LN=256; N_KG=512; N_TR=448
K1_WGS=N_LN+N_KG+N_TR

def wave_sum(a, v):
    for sh in (1,2,4,8):
        a("s_nop 1")
        a(f"v_add_f32_dpp v{v}, v{v}, v{v} row_shr:{sh} row_mask:0xf bank_mask:0xf bound_ctrl:0")
    a("s_nop 1")
    a(f"v_add_f32_dpp v{v}, v{v}, v{v} row_bcast:15 row_mask:0xa bank_mask:0xf")
    a("s_nop 1")
    a(f"v_add_f32_dpp v{v}, v{v}, v{v} row_bcast:31 row_mask:0xc bank_mask:0xf")

def rbf(a, v):
    a(f"v_cvt_pk_bf16_f32 v{v}, v{v}, v{v}")
    a(f"v_lshlrev_b32 v{v}, 16, v{v}")

def ln_pass(a, xv, out, sM, t0):
    s=t0; q=t0+1; r=t0+2; u=t0+3
    a(f"v_add_f32 v{s}, v{xv[0]}, v{xv[1]}")
    for k in range(2,8): a(f"v_add_f32 v{s}, v{s}, v{xv[k]}")
    wave_sum(a, s)
    a("s_nop 1")
    a(f"v_readlane_b32 s{sM}, v{s}, 63")
    a("s_nop 3")
    a(f"v_mov_b32 v{s}, s{sM}")
    a(f"v_mul_f32 v{s}, 0x3b000000, v{s}")
    a(f"v_sub_f32 v{q}, v{xv[0]}, v{s}")
    a(f"v_mul_f32 v{r}, v{q}, v{q}")
    for k in range(1,8):
        a(f"v_sub_f32 v{q}, v{xv[k]}, v{s}")
        a(f"v_fmac_f32 v{r}, v{q}, v{q}")
    wave_sum(a, r)
    a("s_nop 1")
    a(f"v_readlane_b32 s{sM}, v{r}, 63")
    a("s_nop 3")
    a(f"v_mov_b32 v{r}, s{sM}")
    a(f"v_mul_f32 v{r}, 0x3b000000, v{r}")
    rbf(a, r)
    a(f"v_add_f32 v{r}, 0x3727c5ac, v{r}")
    rbf(a, r)
    a(f"v_sqrt_f32 v{r}, v{r}")
    a("s_nop 0")
    rbf(a, r)
    a(f"v_rcp_f32 v{u}, v{r}")
    a("s_nop 0")
    a(f"v_fma_f32 v{q}, -v{r}, v{u}, 1.0")
    a(f"v_fma_f32 v{u}, v{q}, v{u}, v{u}")
    rbf(a, s)
    for k in range(8):
        a(f"v_sub_f32 v{q}, v{xv[k]}, v{s}")
        rbf(a, q)
        a(f"v_mul_f32 v{out[k]}, v{q}, v{u}")
        a(f"v_fma_f32 v{q}, -v{r}, v{out[k]}, v{q}")
        a(f"v_fma_f32 v{out[k]}, v{q}, v{u}, v{out[k]}")
        rbf(a, out[k])

def gen_ln_body(a):
    a("v_lshrrev_b32 v1, 6, v0")
    a("v_and_b32 v2, 63, v0")
    a("s_lshl_b32 s3, s2, 3")
    a("v_lshlrev_b32 v3, 1, v1")
    a("v_add_u32 v3, s3, v3")
    a("v_lshlrev_b32 v4, 10, v3")
    a("v_lshl_add_u32 v4, v2, 4, v4")
    for i in range(2):
        a(f"v_add_u32 v9, {1024*i}, v4")
        a(f"buffer_load_dwordx4 v[{16+4*i}:{19+4*i}], v9, s[8:11], 0 offen")
    a("v_lshlrev_b32 v5, 1, v1")
    a("s_movk_i32 s4, 1040")
    a("v_mul_lo_u32 v5, v5, s4")
    a("v_lshl_add_u32 v5, v2, 4, v5")
    a("v_add_u32 v6, 0x%x, v4" % WS_Y2)
    a("s_waitcnt vmcnt(0)")
    X=list(range(48,56)); XN=list(range(56,64)); Y2=list(range(64,72))
    for i in range(2):
        for k in range(4):
            a(f"v_lshlrev_b32 v{X[2*k]}, 16, v{16+4*i+k}")
            a(f"v_and_b32 v{X[2*k+1]}, 0xffff0000, v{16+4*i+k}")
        ln_pass(a, X, XN, 20, 72)
        ln_pass(a, XN, Y2, 20, 72)
        for k in range(4):
            a(f"v_cvt_pk_bf16_f32 v{76+k}, v{XN[2*k]}, v{XN[2*k+1]}")
            a(f"v_cvt_pk_bf16_f32 v{80+k}, v{Y2[2*k]}, v{Y2[2*k+1]}")
        a(f"ds_write_b128 v5, v[76:79] offset:{1040*i}")
        a(f"v_add_u32 v9, {1024*i}, v6")
        a(f"buffer_store_dwordx4 v[80:83], v9, s[12:15], 0 offen")
        a("s_nop 1")
    a("s_waitcnt lgkmcnt(0)")
    a("s_barrier")
    a("v_lshlrev_b32 v7, 1, v0")
    a("v_lshlrev_b32 v8, 12, v0")
    a("s_lshl_b32 s4, s2, 4")
    a("v_add_u32 v8, s4, v8")
    for c in range(2):
        for g in range(1):
            for j in range(4):
                r0=8*g+2*j
                a(f"ds_read_u16 v{16+j}, v7 offset:{1040*r0+512*c}")
                a(f"ds_read_u16 v{20+j}, v7 offset:{1040*(r0+1)+512*c}")
            a("s_waitcnt lgkmcnt(0)")
            for j in range(4): a(f"v_lshl_or_b32 v{16+j}, v{20+j}, 16, v{16+j}")
            a(f"buffer_store_dwordx4 v[16:19], v8, s[12:15], 0 offen offset:{16*g}")
            a("s_nop 1")
        if c==0: a("v_add_u32 v8, 0x100000, v8")
    a("s_waitcnt vmcnt(0)")

KG_P0=2048
def gen_kgen_body(a):
    a("s_load_dwordx16 s[48:63], s[0:1], 8")
    a("v_and_b32 v1, 127, v0")
    a("s_lshl_b32 s25, s24, 8")
    a("v_lshl_add_u32 v2, v1, 1, s25")
    a("s_lshl_b32 s26, s24, 1")
    a("v_mov_b32 v3, s26")
    a("s_waitcnt lgkmcnt(0)")
    for k in range(6):
        a(f"global_load_ushort v{10+k}, v2, s[{48+2*k}:{49+2*k}]")
    a("global_load_ushort v16, v3, s[60:61]")
    a("s_waitcnt vmcnt(0)")
    for k in range(7): a(f"v_lshlrev_b32 v{10+k}, 16, v{10+k}")
    a("v_mul_f32 v16, 0x3fb8aa3b, v16")
    a("v_exp_f32 v16, v16")
    a("s_nop 0")
    rbf(a,16)
    a("v_mul_f32 v20, v10, v16")
    a("v_mul_f32 v20, 0x3fb8aa3b, v20")
    a("v_mul_f32 v21, v11, v16")
    a("v_mul_f32 v21, 0.15915494, v21")
    a("v_mul_f32 v12, v12, v16")
    a("v_mul_f32 v13, v13, v16")
    a("v_mul_f32 v22, v14, v12")
    a("v_fma_f32 v22, -v15, v13, v22")
    a("v_mul_f32 v23, v14, v13")
    a("v_fma_f32 v23, v15, v12, v23")
    a("v_lshlrev_b32 v4, 4, v1")
    a("ds_write_b128 v4, v[20:23]")
    a("s_waitcnt lgkmcnt(0)")
    a("s_barrier")
    a("v_lshrrev_b32 v1, 6, v0")
    a("v_and_b32 v2, 15, v0")
    a("v_bfe_u32 v3, v0, 4, 2")
    a("v_cvt_f32_u32 v4, v2")
    a("v_mul_f32 v5, 0x41800000, v4")
    a("v_mul_f32 v6, 0x42000000, v4")
    a("v_add_f32 v6, 0x43800000, v6")
    a("v_lshlrev_b32 v7, 9, v1")
    a("v_lshl_add_u32 v7, v3, 4, v7")
    for r in range(16): a(f"v_mov_b32 v{64+r}, 0")
    def cexp(e, dre, dim):
        a(f"v_mul_f32 v30, v8, v{e}")
        a(f"v_mul_f32 v31, v9, v{e}")
        a("v_fract_f32 v31, v31")
        a("v_exp_f32 v30, v30")
        a(f"v_cos_f32 v{dre}, v31")
        a(f"v_sin_f32 v{dim}, v31")
        a("s_nop 0")
        a(f"v_mul_f32 v{dre}, v{dre}, v30")
        a(f"v_mul_f32 v{dim}, v{dim}, v30")
    def csq(sre, sim, dre, dim):
        a(f"v_mul_f32 v{dre}, v{sre}, v{sre}")
        a(f"v_fma_f32 v{dre}, -v{sim}, v{sim}, v{dre}")
        a(f"v_mul_f32 v{dim}, v{sre}, v{sim}")
        a(f"v_add_f32 v{dim}, v{dim}, v{dim}")
    for pp in range(8):
        if pp==0: a("ds_read_b128 v[52:55], v7")
        a("s_waitcnt lgkmcnt(0)")
        for k in range(4): a(f"v_mov_b32 v{8+k}, v{52+k}")
        if pp<7: a(f"ds_read_b128 v[52:55], v7 offset:{64*pp+64}")
        cexp(4, 32, 33)
        csq(32,33,34,35); csq(34,35,36,37); csq(36,37,38,39)
        cexp(5, 40, 41)
        cexp(6, 42, 43)
        csq(42,43,44,45); csq(44,45,46,47)
        for s in range(4):
            w=40+2*s; z=32+2*s
            a(f"v_mul_f32 v48, v10, v{w}")
            a(f"v_fma_f32 v48, -v11, v{w+1}, v48")
            a(f"v_mul_f32 v49, v10, v{w+1}")
            a(f"v_fma_f32 v49, v11, v{w}, v49")
            a(f"v_sub_f32 v50, 0, v{z+1}")
            a("s_nop 1")
            a(f"v_mfma_f32_16x16x4_f32 v[{64+4*s}:{67+4*s}], v48, v{z}, v[{64+4*s}:{67+4*s}]")
            a(f"v_mfma_f32_16x16x4_f32 v[{64+4*s}:{67+4*s}], v49, v50, v[{64+4*s}:{67+4*s}]")
    a("s_nop 7\n s_nop 7")
    a("v_lshlrev_b32 v7, 12, v1")
    a("v_lshl_add_u32 v7, v3, 8, v7")
    a("v_lshl_add_u32 v7, v2, 2, v7")
    for s in range(4):
        for r in range(4):
            a(f"ds_write_b32 v7, v{64+4*s+r} offset:{KG_P0+1024*s+64*r}")
    a("s_waitcnt lgkmcnt(0)")
    a("s_barrier")
    a(f"s_movk_i32 s27, {KR_PITCH}")
    a("s_mul_i32 s27, s27, s24")
    a("s_add_u32 s27, s27, 0x%x" % WS_KR)
    for it in range(2):
        a("v_mov_b32 v1, v0" if it==0 else "v_add_u32 v1, 256, v0\n v_min_u32 v1, 0x103, v1")
        for e in range(8):
            a(f"v_lshlrev_b32 v2, 3, v1")
            a(f"v_sub_u32 v2, {2048-e}, v2")
            a("v_or_b32 v3, 1, v2")
            a("v_ffbh_u32 v3, v3")
            a("v_sub_u32 v3, 24, v3")
            a("v_max_i32 v3, 0, v3")
            a("v_lshlrev_b32 v4, v3, 1")
            a("v_lshrrev_b32 v4, 1, v4")
            a("v_lshrrev_b32 v5, v3, v2")
            a("v_and_b32 v5, 1, v5")
            a("v_add3_u32 v4, v4, v5, -1")
            a("v_max_i32 v4, 0, v4")
            a("v_add_u32 v4, v4, v2")
            a("v_lshrrev_b32 v4, v3, v4")
            a("v_lshlrev_b32 v5, 8, v3")
            a("v_subrev_u32 v5, 128, v5")
            a("v_max_i32 v5, 0, v5")
            a("v_add_u32 v4, v4, v5")
            a("v_min_u32 v4, 0x3ff, v4")
            a("v_lshlrev_b32 v4, 2, v4")
            for w in range(4):
                a(f"ds_read_b32 v{60+4*e+w}, v4 offset:{KG_P0+4096*w}")
            a(f"v_mov_b32 v{40+e}, v2")
        a("s_waitcnt lgkmcnt(0)")
        for e in range(8):
            a(f"v_add_f32 v20, v{60+4*e}, v{61+4*e}")
            a(f"v_add_f32 v22, v{62+4*e}, v{63+4*e}")
            a("v_add_f32 v20, v20, v22")
            a(f"v_cmp_gt_u32 vcc, 0x800, v{40+e}")
            a("s_nop 1")
            a(f"v_cndmask_b32 v{8+e}, 0, v20, vcc")
        for k in range(4): a(f"v_cvt_pk_bf16_f32 v{24+k}, v{8+2*k}, v{9+2*k}")
        a("v_lshlrev_b32 v2, 4, v1")
        a("v_add_u32 v2, s27, v2")
        a("buffer_store_dwordx4 v[24:27], v2, s[12:15], 0 offen")
        a("s_nop 1")
    a("s_waitcnt vmcnt(0)")

def gen_tr_body(a):
    l2=a.newlabel("tr_w2"); lj=a.newlabel("tr_j")
    a("s_cmp_ge_u32 s24, 224")
    a(f"s_cbranch_scc1 {l2}")
    a("s_load_dwordx2 s[4:5], s[0:1], 80")
    a("s_mov_b32 s28, 1792")
    a("s_mov_b32 s29, 512")
    a("s_mul_hi_u32 s30, s24, 0x924924A")
    a("s_mul_i32 s31, s30, 28")
    a("s_sub_u32 s31, s24, s31")
    a("s_mov_b32 s32, 0x%x" % WS_W1T)
    a(f"s_branch {lj}")
    a.label(l2)
    a("s_load_dwordx2 s[4:5], s[0:1], 96")
    a("s_mov_b32 s28, 512")
    a("s_mov_b32 s29, 1792")
    a("s_sub_u32 s33, s24, 224")
    a("s_lshr_b32 s30, s33, 3")
    a("s_and_b32 s31, s33, 7")
    a("s_mov_b32 s32, 0x%x" % WS_W2T)
    a.label(lj)
    a("s_waitcnt lgkmcnt(0)")
    srd(a, 16, 4, 0x1C0000)
    a("v_lshrrev_b32 v1, 2, v0")
    a("v_and_b32 v2, 3, v0")
    a("s_lshl_b32 s33, s30, 6")
    a("v_add_u32 v3, s33, v1")
    a("v_mul_lo_u32 v3, v3, s28")
    a("s_lshl_b32 s34, s31, 6")
    a("v_add_u32 v3, s34, v3")
    a("v_lshlrev_b32 v3, 1, v3")
    a("v_lshl_add_u32 v3, v2, 5, v3")
    a("buffer_load_dwordx4 v[8:11], v3, s[16:19], 0 offen")
    a("buffer_load_dwordx4 v[12:15], v3, s[16:19], 0 offen offset:16")
    a("s_movk_i32 s35, 144")
    a("v_mul_lo_u32 v4, v1, s35")
    a("v_lshl_add_u32 v4, v2, 5, v4")
    a("s_waitcnt vmcnt(0)")
    a("ds_write_b128 v4, v[8:11]")
    a("ds_write_b128 v4, v[12:15] offset:16")
    a("s_waitcnt lgkmcnt(0)")
    a("s_barrier")
    a("v_lshlrev_b32 v5, 1, v1")
    a("s_movk_i32 s35, 2304")
    a("v_mul_lo_u32 v6, v2, s35")
    a("v_add_u32 v5, v5, v6")
    for j in range(8):
        a(f"ds_read_u16 v{8+j}, v5 offset:{144*(2*j)}")
        a(f"ds_read_u16 v{16+j}, v5 offset:{144*(2*j+1)}")
    a("v_add_u32 v3, s34, v1")
    a("v_mul_lo_u32 v3, v3, s29")
    a("v_add_u32 v3, s33, v3")
    a("v_lshlrev_b32 v3, 1, v3")
    a("v_lshl_add_u32 v3, v2, 5, v3")
    a("v_add_u32 v3, s32, v3")
    a("s_waitcnt lgkmcnt(0)")
    for j in range(8): a(f"v_lshl_or_b32 v{8+j}, v{16+j}, 16, v{8+j}")
    a("buffer_store_dwordx4 v[8:11], v3, s[12:15], 0 offen")
    a("buffer_store_dwordx4 v[12:15], v3, s[12:15], 0 offen offset:16")
    a("s_waitcnt vmcnt(0)")

def gen_k1(a, name="k1_kernel"):
    a.raw(f".globl {name}\n.p2align 8\n.type {name},@function")
    a.label(name)
    lk=a.newlabel("k1_kg"); lt=a.newlabel("k1_tr"); le=a.newlabel("k1_end")
    a(f"s_cmp_ge_u32 s2, {K1_WGS}")
    a(f"s_cbranch_scc1 {le}")
    a("s_load_dwordx2 s[4:5], s[0:1], 0")
    a("s_load_dwordx2 s[6:7], s[0:1], 128")
    a("s_waitcnt lgkmcnt(0)")
    srd(a, 8, 4, 0x200000); srd(a, 12, 6, WS_SIZE)
    a(f"s_cmp_ge_u32 s2, {N_LN}")
    a(f"s_cbranch_scc1 {lk}")
    import os
    R=os.environ.get("K1R","lkt")
    if "l" in R: gen_ln_body(a)
    a("s_endpgm")
    a.label(lk)
    a(f"s_sub_u32 s24, s2, {N_LN}")
    a(f"s_cmp_ge_u32 s24, {N_KG}")
    a(f"s_cbranch_scc1 {lt}")
    if "k" in R: gen_kgen_body(a)
    a("s_endpgm")
    a.label(lt)
    a(f"s_sub_u32 s24, s24, {N_KG}")
    if "t" in R: gen_tr_body(a)
    a.label(le)
    a("s_endpgm")
```

```python
from asmlib import *
from k1 import *
from gemm import *
N_G1=448; N_CONV=512; K2_WGS=N_G1+N_CONV
CP=4160; U0=8*CP; RED=U0+7680
def pre1(a,TN,TM):
    a("s_load_dwordx2 s[4:5], s[0:1], 88")
    a("s_waitcnt lgkmcnt(0)")
    srd(a,16,4,3584)
    a("v_lshlrev_b32 v12, 6, v10")
    a("v_lshl_add_u32 v12, v8, 2, v12")
    a("v_add_u32 v12, s44, v12")
    a("v_lshlrev_b32 v13, 1, v12")
    for tn in range(TN):
        for q in range(4):
            a(f"buffer_load_dwordx2 v[{96+8*tn+2*q}:{97+8*tn+2*q}], v13, s[16:19], 0 offen offset:{(tn*32+8*q)*2}")
def epi1(a,TN,TM):
    a("v_lshlrev_b32 v12, 6, v10")
    a("v_lshl_add_u32 v12, v8, 2, v12")
    a("v_add_u32 v12, s44, v12")
    a("v_lshlrev_b32 v13, 1, v12")
    a("v_lshlrev_b32 v30, 5, v11")
    a("v_add_u32 v30, v30, v7")
    a("v_add_u32 v30, s45, v30")
    a("s_movk_i32 s41, 3584")
    a("v_mul_lo_u32 v30, v30, s41")
    a("v_add_u32 v30, v30, v13")
    a("v_add_u32 v30, 0x%x, v30"%WS_H)
    for tn in range(TN):
        c=64+16*tn
        for q in range(4):
            bb=96+8*tn+2*q
            for r in range(4):
                v=c+4*q+r
                rbf(a,v)
                a(f"v_lshlrev_b32 v31, 16, v{bb+r//2}" if r%2==0 else f"v_and_b32 v31, 0xffff0000, v{bb+r//2}")
                a(f"v_add_f32 v{v}, v{v}, v31")
                rbf(a,v)
                gelu(a,v,31,29)
            a(f"v_cvt_pk_bf16_f32 v{32+2*q}, v{c+4*q}, v{c+4*q+1}")
            a(f"v_cvt_pk_bf16_f32 v{33+2*q}, v{c+4*q+2}, v{c+4*q+3}")
            a(f"buffer_store_dwordx2 v[{32+2*q}:{33+2*q}], v30, s[12:15], 0 offen offset:{(tn*32+8*q)*2}")
        a("s_nop 1")
    a("s_waitcnt vmcnt(0)")
def pre2(a,TN,TM):
    a("s_load_dwordx2 s[4:5], s[0:1], 104")
    a("s_load_dwordx2 s[6:7], s[0:1], 0")
    a("s_load_dwordx2 s[20:21], s[0:1], 112")
    a("s_waitcnt lgkmcnt(0)")
    srd(a,16,4,1024); srd(a,24,6,0x200000); srd(a,28,20,0x200000)
    a("v_lshlrev_b32 v12, 5, v10")
    a("v_lshl_add_u32 v12, v8, 2, v12")
    a("v_add_u32 v12, s44, v12")
    a("v_lshlrev_b32 v13, 1, v12")
    a("v_lshlrev_b32 v30, 5, v11")
    a("v_add_u32 v30, v30, v7")
    a("v_add_u32 v30, s45, v30")
    a("v_lshl_add_u32 v14, v30, 10, v13")
    a("v_lshlrev_b32 v15, 12, v12")
    a("v_lshl_add_u32 v15, v30, 1, v15")
    a("v_add_u32 v15, 0x%x, v15"%WS_YA)
    for q in range(4):
        b=96+8*q
        a(f"buffer_load_dwordx2 v[{b}:{b+1}], v13, s[16:19], 0 offen offset:{16*q}")
        a(f"buffer_load_dwordx2 v[{b+2}:{b+3}], v14, s[24:27], 0 offen offset:{16*q}")
        for r in range(4):
            a(f"v_add_u32 v31, {4096*(8*q+r)}, v15")
            a(f"buffer_load_ushort v{b+4+r}, v31, s[12:15], 0 offen")
def epi2(a,TN,TM):
    c=64
    for q in range(4):
        b=96+8*q
        for r in range(4):
            v=c+4*q+r
            rbf(a,v)
            a(f"v_lshlrev_b32 v38, 16, v{b+r//2}" if r%2==0 else f"v_and_b32 v38, 0xffff0000, v{b+r//2}")
            a(f"v_add_f32 v{v}, v{v}, v38")
            rbf(a,v)
            a(f"v_lshlrev_b32 v38, 16, v{b+2+r//2}" if r%2==0 else f"v_and_b32 v38, 0xffff0000, v{b+2+r//2}")
            a(f"v_lshlrev_b32 v39, 16, v{b+4+r}")
            a("v_add_f32 v38, v38, v39")
            rbf(a,38)
            a(f"v_add_f32 v{v}, v{v}, v38")
        a(f"v_cvt_pk_bf16_f32 v{32+2*q}, v{c+4*q}, v{c+4*q+1}")
        a(f"v_cvt_pk_bf16_f32 v{33+2*q}, v{c+4*q+2}, v{c+4*q+3}")
        a(f"buffer_store_dwordx2 v[{32+2*q}:{33+2*q}], v14, s[28:31], 0 offen offset:{16*q}")
    a("s_waitcnt vmcnt(0)")

def conv_body(a):
    a(f"s_movk_i32 s27, {KR_PITCH}")
    a("s_mul_i32 s27, s27, s24")
    a("s_add_u32 s27, s27, 0x%x"%WS_KR)
    a("s_lshl_b32 s28, s24, 12")
    a("v_lshrrev_b32 v1, 6, v0")
    a("v_and_b32 v2, 63, v0")
    a("v_mov_b32 v8, 0\n v_mov_b32 v9, 0\n v_mov_b32 v10, 0\n v_mov_b32 v11, 0")
    a("v_min_u32 v3, 159, v0")
    a("v_lshlrev_b32 v3, 4, v3")
    a(f"ds_write_b128 v3, v[8:11] offset:{U0}")
    a("v_lshlrev_b32 v3, 4, v0")
    a("v_add_u32 v3, s28, v3")
    a("buffer_load_dwordx4 v[12:15], v3, s[12:15], 0 offen")
    for it in range(2):
        a("v_mov_b32 v4, v0" if it==0 else "v_add_u32 v4, 256, v0\n v_min_u32 v4, 0x103, v4")
        a("s_nop 0")
        a(f"v_lshlrev_b32 v{5+it}, 4, v4")
        a(f"v_add_u32 v{5+it}, s27, v{5+it}")
        a(f"v_subrev_u32 v7, 16, v{5+it}")
        a(f"buffer_load_dwordx4 v[{16+8*it}:{19+8*it}], v7, s[12:15], 0 offen")
        a(f"buffer_load_dwordx4 v[{20+8*it}:{23+8*it}], v{5+it}, s[12:15], 0 offen")
    a("v_lshrrev_b32 v3, 2, v0")
    a("v_add_u32 v3, 32, v3")
    a("s_movk_i32 s29, 80")
    a("v_mul_lo_u32 v3, v3, s29")
    a("v_and_b32 v4, 3, v0")
    a("v_lshl_add_u32 v3, v4, 4, v3")
    a("s_waitcnt vmcnt(0)")
    a(f"ds_write_b128 v3, v[12:15] offset:{U0}")
    for it in range(2):
        a("v_mov_b32 v4, v0" if it==0 else "v_add_u32 v4, 256, v0\n v_min_u32 v4, 0x103, v4")
        a("v_cmp_eq_u32 vcc, 0, v4")
        a("s_nop 1")
        for k in range(4): a(f"v_cndmask_b32 v{16+8*it+k}, v{16+8*it+k}, 0, vcc")
        a("v_lshlrev_b32 v4, 4, v4")
        W=[16+8*it+k for k in range(8)]
        for q in range(8):
            for k in range(4):
                e=8-q+2*k
                if e%2==0: a(f"v_mov_b32 v{40+k}, v{W[e//2]}")
                else: a(f"v_alignbit_b32 v{40+k}, v{W[e//2+1]}, v{W[e//2]}, 16")
            a(f"ds_write_b128 v4, v[40:43] offset:{q*CP}")
            a("s_nop 1")
    a("s_waitcnt lgkmcnt(0)")
    a("s_barrier")
    le=a.newlabel("cv_skip")
    a("v_readfirstlane_b32 s30, v1")
    a("s_nop 3")
    a("s_cmp_eq_u32 s30, 3")
    a(f"s_cbranch_scc1 {le}")
    a("v_and_b32 v7, 31, v2\n v_lshrrev_b32 v8, 5, v2")
    a("v_and_b32 v3, 7, v7")
    a(f"v_mul_u32_u24 v3, {CP}, v3")
    a("v_and_b32 v4, 24, v7")
    a("v_lshlrev_b32 v4, 1, v4")
    a("v_sub_u32 v3, v3, v4")
    a("v_lshl_add_u32 v3, v8, 4, v3")
    a("s_lshr_b32 s31, s30, 1")
    a("s_mul_i32 s32, s31, 2048")
    a("s_sub_u32 s32, %d, s32"%(4096-2048))
    a("v_add_u32 v3, s32, v3")
    a("s_min_u32 s33, s30, 1")
    a("s_mul_i32 s33, s33, 32")
    a("s_mul_i32 s34, s31, 32")
    a("s_sub_u32 s33, s33, s34")
    a("v_add_u32 v4, s33, v7")
    a("v_mul_lo_u32 v4, v4, s29")
    a("v_lshl_add_u32 v4, v8, 4, v4")
    for r in range(16): a(f"v_mov_b32 v{64+r}, 0")
    lm=a.newlabel("cv_m"); a("s_cmp_eq_u32 s30, 2"); a(f"s_cbranch_scc1 {lm}")
    a("ds_read_b128 v[32:35], v3 offset:2080")
    a(f"ds_read_b128 v[36:39], v4 offset:{U0+32*80+32}")
    a("s_waitcnt lgkmcnt(0)")
    a("v_mfma_f32_32x32x16_bf16 v[64:79], v[32:35], v[36:39], v[64:79]")
    a.label(lm)
    for s in range(64):
        if s==63:
            lsk=a.newlabel("cv_l"); a("s_cmp_eq_u32 s30, 2"); a(f"s_cbranch_scc1 {lsk}")
        sg=s//2
        boff=U0+(32-sg)*80 if s%2==0 else U0+(32-sg-1)*80+32
        if s==0:
            for p in range(3):
                bo=U0+(32-p//2)*80 if p%2==0 else U0+(32-p//2-1)*80+32
                a(f"ds_read_b128 v[{32+8*(p%4)}:{35+8*(p%4)}], v3 offset:{32*(64-p)}")
                a(f"ds_read_b128 v[{36+8*(p%4)}:{39+8*(p%4)}], v4 offset:{bo}")
        if s+3<64:
            p=s+3; bo=U0+(32-p//2)*80 if p%2==0 else U0+(32-p//2-1)*80+32
            a(f"ds_read_b128 v[{32+8*(p%4)}:{35+8*(p%4)}], v3 offset:{32*(64-p)}")
            a(f"ds_read_b128 v[{36+8*(p%4)}:{39+8*(p%4)}], v4 offset:{bo}")
        a(f"s_waitcnt lgkmcnt({2*min(3,63-s)})")
        a(f"v_mfma_f32_32x32x16_bf16 v[64:79], v[{32+8*(s%4)}:{35+8*(s%4)}], v[{36+8*(s%4)}:{39+8*(s%4)}], v[64:79]")
    a.label(lsk)
    a("s_waitcnt lgkmcnt(0)")
    a("s_nop 7\n s_nop 7")
    a("v_lshlrev_b32 v5, 7, v7")
    a("v_lshl_add_u32 v5, v8, 4, v5")
    a("v_lshl_add_u32 v5, v1, 12, v5")
    for q in range(4): a(f"ds_write_b128 v5, v[{64+4*q}:{67+4*q}] offset:{RED+32*q}")
    a.label(le)
    a("s_waitcnt lgkmcnt(0)")
    a("s_barrier")
    a("s_load_dwordx2 s[4:5], s[0:1], 64")
    a("s_lshl_b32 s6, s24, 1")
    a("v_mov_b32 v9, s6")
    a("s_waitcnt lgkmcnt(0)")
    a("global_load_ushort v9, v9, s[4:5]")
    a("v_lshlrev_b32 v3, 5, v0")
    a("v_cmp_lt_u32 vcc, 0x7f, v0")
    a("v_mov_b32 v6, 0x1000")
    a("s_nop 1")
    a("v_cndmask_b32 v6, 0, v6, vcc")
    a(f"ds_read_b128 v[16:19], v3 offset:{RED}")
    a(f"ds_read_b128 v[20:23], v3 offset:{RED+16}")
    a("v_add_u32 v7, v3, v6")
    a(f"ds_read_b128 v[24:27], v7 offset:{RED}")
    a(f"ds_read_b128 v[28:31], v7 offset:{RED+16}")
    a("v_lshrrev_b32 v4, 2, v0")
    a("v_add_u32 v4, 32, v4")
    a("v_mul_lo_u32 v4, v4, s29")
    a("v_and_b32 v5, 3, v0")
    a("v_lshl_add_u32 v4, v5, 4, v4")
    a(f"ds_read_b128 v[12:15], v4 offset:{U0}")
    a("v_cndmask_b32 v8, 0, 1.0, vcc")
    a("s_waitcnt vmcnt(0) lgkmcnt(0)")
    a("v_lshlrev_b32 v9, 16, v9")
    for e in range(8):
        a(f"v_fma_f32 v{16+e}, v{24+e}, v8, v{16+e}")
        rbf(a,16+e)
        a(f"v_lshlrev_b32 v10, 16, v{12+e//2}" if e%2==0 else f"v_and_b32 v10, 0xffff0000, v{12+e//2}")
        a("v_mul_f32 v10, v10, v9")
        rbf(a,10)
        a(f"v_add_f32 v{16+e}, v{16+e}, v10")
    for k in range(4): a(f"v_cvt_pk_bf16_f32 v{40+k}, v{16+2*k}, v{17+2*k}")
    a("v_lshlrev_b32 v3, 4, v0")
    a("v_add_u32 v3, s28, v3")
    a("v_add_u32 v3, 0x%x, v3"%WS_YA)
    a("buffer_store_dwordx4 v[40:43], v3, s[12:15], 0 offen")
    a("s_waitcnt vmcnt(0)")

def prolog(a,name,n):
    a.raw(f".globl {name}\n.p2align 8\n.type {name},@function")
    a.label(name)
    le=a.newlabel("end")
    a(f"s_cmp_ge_u32 s2, {n}")
    a(f"s_cbranch_scc1 {le}")
    a("s_load_dwordx2 s[6:7], s[0:1], 128")
    a("s_waitcnt lgkmcnt(0)")
    srd(a,12,6,WS_SIZE)
    return le
def gen_k2(a):
    le=prolog(a,"k2_kernel",K2_WGS); lc=a.newlabel("conv")
    a(f"s_cmp_ge_u32 s2, {N_G1}")
    a(f"s_cbranch_scc1 {lc}")
    a("s_lshr_b32 s44, s2, 5\n s_lshl_b32 s44, s44, 7")
    a("s_and_b32 s45, s2, 31\n s_lshl_b32 s45, s45, 6")
    gemm_body(a,128,64,512,WS_W1T,1024,WS_Y2,1024,44,45,2,epi1,pre1)
    a("s_endpgm")
    a.label(lc)
    a(f"s_sub_u32 s24, s2, {N_G1}")
    conv_body(a)
    a.label(le); a("s_endpgm")
def gen_k3(a):
    le=prolog(a,"k3_kernel",256)
    a("s_lshr_b32 s44, s2, 5\n s_lshl_b32 s44, s44, 6")
    a("s_and_b32 s45, s2, 31\n s_lshl_b32 s45, s45, 6")
    gemm_body(a,64,64,1792,WS_W2T,3584,WS_H,3584,44,45,9,epi2,pre2,NW=8)
    a.label(le); a("s_endpgm")
```

```python
from asmlib import *
from k1 import *
def gemm_body(a, BN, BM, K, w_off, w_pitch, x_off, x_pitch, sN0, sM0, S, epi, pre=None, NW=4):
    TN=BN//64; TM=BM//64; NK=K//64; ST=(BN+BM)*128
    a("v_lshrrev_b32 v1, 6, v0")
    a("v_and_b32 v2, 63, v0")
    a("v_readfirstlane_b32 s40, v1")
    a("v_lshrrev_b32 v3, 3, v2")
    a("v_lshl_add_u32 v3, v1, 3, v3")
    a("v_lshrrev_b32 v4, 1, v3")
    a("v_and_b32 v4, 7, v4")
    a("v_and_b32 v5, 7, v2")
    a("v_xor_b32 v4, v4, v5")
    a("v_lshlrev_b32 v4, 4, v4")
    a(f"v_add_u32 v5, s{sN0}, v3")
    a(f"s_mov_b32 s41, {w_pitch}")
    a("v_mul_lo_u32 v5, v5, s41")
    a("v_add_u32 v5, v5, v4")
    a(f"v_add_u32 v6, s{sM0}, v3")
    a(f"s_mov_b32 s41, {x_pitch}")
    a("v_mul_lo_u32 v6, v6, s41")
    a("v_add_u32 v6, v6, v4")
    a("v_and_b32 v7, 31, v2")
    a("v_lshrrev_b32 v8, 5, v2")
    a("v_lshrrev_b32 v9, 1, v7")
    a("v_and_b32 v9, 7, v9")
    a("v_and_b32 v10, 1, v1")
    a("v_bfe_u32 v11, v1, 1, 1")
    a("s_lshr_b32 s46, s40, 2")
    for ks in range(4):
        a(f"v_add_u32 v12, {2*ks}, v8")
        a("v_xor_b32 v12, v12, v9")
        a("v_lshlrev_b32 v12, 4, v12")
        a(f"v_lshl_add_u32 v12, v7, 7, v12")
        a(f"v_mul_u32_u24 v13, {BN//2*128}, v10")
        a(f"v_add_u32 v{16+ks}, v12, v13")
        a(f"v_mul_u32_u24 v13, {BM//2*128}, v11")
        a(f"v_add_u32 v13, {BN*128}, v13")
        a(f"v_add_u32 v{20+ks}, v12, v13")
    for i in range(16*TN*TM): a(f"v_mov_b32 v{64+i}, 0")
    if pre: pre(a,TN,TM)
    nb_w=BN//(8*NW); nb_x=BM//(8*NW)
    def issue(kt):
        st=kt%S
        for i in range(nb_w):
            a(f"s_lshl_b32 s42, s40, 10")
            a(f"s_add_u32 s42, s42, {st*ST+i*1024*NW}")
            a("s_mov_b32 m0, s42")
            a(f"s_mov_b32 s43, {w_off+kt*128+i*8*NW*w_pitch}")
            a("buffer_load_dwordx4 v5, s[12:15], s43 offen lds")
        for i in range(nb_x):
            a(f"s_lshl_b32 s42, s40, 10")
            a(f"s_add_u32 s42, s42, {st*ST+BN*128+i*1024*NW}")
            a("s_mov_b32 m0, s42")
            a(f"s_mov_b32 s43, {x_off+kt*128+i*8*NW*x_pitch}")
            a("buffer_load_dwordx4 v6, s[12:15], s43 offen lds")
    per=nb_w+nb_x
    for kt in range(min(S-1,NK)): issue(kt)
    for kt in range(NK):
        inflight=min(NK-1-kt, S-2)
        a(f"s_waitcnt vmcnt({inflight*per})")
        a("s_barrier")
        if kt+S-1<NK: issue(kt+S-1)
        st=kt%S
        for j in range(8): a(f"v_add_u32 v{24+j}, {st*ST}, v{16+j}")
        def rd(ks,slot):
            b=8*slot
            for tn in range(TN): a(f"ds_read_b128 v[{32+b+4*tn}:{35+b+4*tn}], v{24+ks} offset:{tn*4096}")
            for tm in range(TM): a(f"ds_read_b128 v[{48+b+4*tm}:{51+b+4*tm}], v{28+ks} offset:{tm*4096}")
        def mm(slot):
            b=8*slot
            for tn in range(TN):
                for tm in range(TM):
                    c=64+16*(tn*TM+tm)
                    a(f"v_mfma_f32_32x32x16_bf16 v[{c}:{c+15}], v[{32+b+4*tn}:{35+b+4*tn}], v[{48+b+4*tm}:{51+b+4*tm}], v[{c}:{c+15}]")
        if NW==4:
            rd(0,0)
            for ks in range(4):
                if ks<3: rd(ks+1,(ks+1)%2)
                a(f"s_waitcnt lgkmcnt({(TN+TM) if ks<3 else 0})")
                mm(ks%2)
        else:
            l1=a.newlabel("kh"); l2=a.newlabel("kh")
            a("s_cmp_eq_u32 s46, 1"); a(f"s_cbranch_scc1 {l1}")
            rd(0,0); rd(1,1); a(f"s_branch {l2}")
            a.label(l1); rd(2,0); rd(3,1)
            a.label(l2)
            a(f"s_waitcnt lgkmcnt({TN+TM})"); mm(0); a("s_waitcnt lgkmcnt(0)"); mm(1)
    a("s_nop 7\n s_nop 7")
    if NW==8:
        le=a.newlabel("gend"); lr=a.newlabel("gred")
        a("s_barrier")
        a("v_and_b32 v12, 3, v1")
        a("v_lshlrev_b32 v12, 12, v12")
        a("v_lshl_add_u32 v12, v2, 4, v12")
        a("s_cmp_eq_u32 s46, 0"); a(f"s_cbranch_scc1 {lr}")
        for q in range(4*TN*TM): a(f"ds_write_b128 v12, v[{64+4*q}:{67+4*q}] offset:{1024*q}")
        a("s_waitcnt lgkmcnt(0)"); a("s_barrier"); a("s_waitcnt vmcnt(0)"); a("s_endpgm")
        a.label(lr)
        a("s_barrier")
        for q in range(4*TN*TM): a(f"ds_read_b128 v[{32+4*q}:{35+4*q}], v12 offset:{1024*q}")
        a("s_waitcnt lgkmcnt(0)")
        for q in range(16*TN*TM): a(f"v_add_f32 v{64+q}, v{64+q}, v{32+q}")
    epi(a, TN, TM)

def gelu(a, v, t1, t2):
    a(f"v_mul_f32 v{t1}, v{v}, v{v}")
    a(f"v_mul_f32 v{t1}, v{t1}, v{v}")
    a(f"v_mul_f32 v{t1}, 0x3d372713, v{t1}")
    a(f"v_add_f32 v{t1}, v{t1}, v{v}")
    a(f"v_mul_f32 v{t1}, 0xc0135761, v{t1}")
    a(f"v_exp_f32 v{t1}, v{t1}")
    a("s_nop 0")
    a(f"v_add_f32 v{t1}, 1.0, v{t1}")
    a(f"v_rcp_f32 v{t1}, v{t1}")
    a("s_nop 0")
    a(f"v_mul_f32 v{v}, v{v}, v{t1}")
    rbf(a, v)
```

```python
from asmlib import *
from k1 import *
from gemm import *
N_G1=224; N_CONV=512; K2_WGS=N_G1+N_CONV
CP=4160; U0=8*CP; RED=U0+7680
def pre1(a,TN,TM):
    a("s_load_dwordx2 s[4:5], s[0:1], 88")
    a("s_waitcnt lgkmcnt(0)")
    srd(a,16,4,3584)
    a("v_lshlrev_b32 v12, 6, v10")
    a("v_lshl_add_u32 v12, v8, 2, v12")
    a("v_add_u32 v12, s44, v12")
    a("v_lshlrev_b32 v13, 1, v12")
    for tn in range(TN):
        for q in range(4):
            a(f"buffer_load_dwordx2 v[{128+8*tn+2*q}:{129+8*tn+2*q}], v13, s[16:19], 0 offen offset:{(tn*32+8*q)*2}")
def epi1(a,TN,TM):
    a("v_lshlrev_b32 v12, 6, v10")
    a("v_lshl_add_u32 v12, v8, 2, v12")
    a("v_add_u32 v12, s44, v12")
    a("v_lshlrev_b32 v13, 1, v12")
    a("v_lshlrev_b32 v30, 6, v11")
    a("v_add_u32 v30, v30, v7")
    a("v_add_u32 v30, s45, v30")
    a("s_movk_i32 s41, 3584")
    a("v_mul_lo_u32 v30, v30, s41")
    a("v_add_u32 v30, v30, v13")
    a("v_add_u32 v30, 0x%x, v30"%WS_H)
    for tn,tm in [(x,y) for y in range(TM) for x in range(TN)]:
        c=64+16*(tn*TM+tm)
        if tm==1 and tn==0: a(f"v_add_u32 v30, {32*3584}, v30")
        for q in range(4):
            bb=128+8*tn+2*q
            for r in range(4):
                v=c+4*q+r
                rbf(a,v)
                a(f"v_lshlrev_b32 v31, 16, v{bb+r//2}" if r%2==0 else f"v_and_b32 v31, 0xffff0000, v{bb+r//2}")
                a(f"v_add_f32 v{v}, v{v}, v31")
                rbf(a,v)
                gelu(a,v,31,29)
            a(f"v_cvt_pk_bf16_f32 v{32+2*q}, v{c+4*q}, v{c+4*q+1}")
            a(f"v_cvt_pk_bf16_f32 v{33+2*q}, v{c+4*q+2}, v{c+4*q+3}")
            a(f"buffer_store_dwordx2 v[{32+2*q}:{33+2*q}], v30, s[12:15], 0 offen offset:{(tn*32+8*q)*2}")
        a("s_nop 1")
    a("s_waitcnt vmcnt(0)")
def pre2(a,TN,TM):
    a("s_load_dwordx2 s[4:5], s[0:1], 104")
    a("s_load_dwordx2 s[6:7], s[0:1], 0")
    a("s_load_dwordx2 s[20:21], s[0:1], 112")
    a("s_waitcnt lgkmcnt(0)")
    srd(a,16,4,1024); srd(a,24,6,0x200000); srd(a,28,20,0x200000)
    a("v_lshlrev_b32 v12, 5, v10")
    a("v_lshl_add_u32 v12, v8, 2, v12")
    a("v_add_u32 v12, s44, v12")
    a("v_lshlrev_b32 v13, 1, v12")
    a("v_lshlrev_b32 v30, 5, v11")
    a("v_add_u32 v30, v30, v7")
    a("v_add_u32 v30, s45, v30")
    a("v_lshl_add_u32 v14, v30, 10, v13")
    a("v_lshlrev_b32 v15, 12, v12")
    a("v_lshl_add_u32 v15, v30, 1, v15")
    a("v_add_u32 v15, 0x%x, v15"%WS_YA)
    for q in range(4):
        b=96+8*q
        a(f"buffer_load_dwordx2 v[{b}:{b+1}], v13, s[16:19], 0 offen offset:{16*q}")
        a(f"buffer_load_dwordx2 v[{b+2}:{b+3}], v14, s[24:27], 0 offen offset:{16*q}")
        for r in range(4):
            a(f"v_add_u32 v31, {4096*(8*q+r)}, v15")
            a(f"buffer_load_ushort v{b+4+r}, v31, s[12:15], 0 offen")
def epi2(a,TN,TM):
    c=64
    for q in range(4):
        b=96+8*q
        for r in range(4):
            v=c+4*q+r
            rbf(a,v)
            a(f"v_lshlrev_b32 v38, 16, v{b+r//2}" if r%2==0 else f"v_and_b32 v38, 0xffff0000, v{b+r//2}")
            a(f"v_add_f32 v{v}, v{v}, v38")
            rbf(a,v)
            a(f"v_lshlrev_b32 v38, 16, v{b+2+r//2}" if r%2==0 else f"v_and_b32 v38, 0xffff0000, v{b+2+r//2}")
            a(f"v_lshlrev_b32 v39, 16, v{b+4+r}")
            a("v_add_f32 v38, v38, v39")
            rbf(a,38)
            a(f"v_add_f32 v{v}, v{v}, v38")
        a(f"v_cvt_pk_bf16_f32 v{32+2*q}, v{c+4*q}, v{c+4*q+1}")
        a(f"v_cvt_pk_bf16_f32 v{33+2*q}, v{c+4*q+2}, v{c+4*q+3}")
        a(f"buffer_store_dwordx2 v[{32+2*q}:{33+2*q}], v14, s[28:31], 0 offen offset:{16*q}")
    a("s_waitcnt vmcnt(0)")

def conv_body(a):
    a(f"s_movk_i32 s27, {KR_PITCH}")
    a("s_mul_i32 s27, s27, s24")
    a("s_add_u32 s27, s27, 0x%x"%WS_KR)
    a("s_lshl_b32 s28, s24, 12")
    a("v_lshrrev_b32 v1, 6, v0")
    a("v_and_b32 v2, 63, v0")
    a("v_mov_b32 v8, 0\n v_mov_b32 v9, 0\n v_mov_b32 v10, 0\n v_mov_b32 v11, 0")
    a("v_min_u32 v3, 159, v0")
    a("v_lshlrev_b32 v3, 4, v3")
    a(f"ds_write_b128 v3, v[8:11] offset:{U0}")
    a("v_lshlrev_b32 v3, 4, v0")
    a("v_add_u32 v3, s28, v3")
    a("buffer_load_dwordx4 v[12:15], v3, s[12:15], 0 offen")
    for it in range(2):
        a("v_mov_b32 v4, v0" if it==0 else "v_add_u32 v4, 256, v0\n v_min_u32 v4, 0x103, v4")
        a("s_nop 0")
        a(f"v_lshlrev_b32 v{5+it}, 4, v4")
        a(f"v_add_u32 v{5+it}, s27, v{5+it}")
        a(f"v_subrev_u32 v7, 16, v{5+it}")
        a(f"buffer_load_dwordx4 v[{16+8*it}:{19+8*it}], v7, s[12:15], 0 offen")
        a(f"buffer_load_dwordx4 v[{20+8*it}:{23+8*it}], v{5+it}, s[12:15], 0 offen")
    a("v_lshrrev_b32 v3, 2, v0")
    a("v_add_u32 v3, 32, v3")
    a("s_movk_i32 s29, 80")
    a("v_mul_lo_u32 v3, v3, s29")
    a("v_and_b32 v4, 3, v0")
    a("v_lshl_add_u32 v3, v4, 4, v3")
    a("s_waitcnt vmcnt(0)")
    a(f"ds_write_b128 v3, v[12:15] offset:{U0}")
    for it in range(2):
        a("v_mov_b32 v4, v0" if it==0 else "v_add_u32 v4, 256, v0\n v_min_u32 v4, 0x103, v4")
        a("v_cmp_eq_u32 vcc, 0, v4")
        a("s_nop 1")
        for k in range(4): a(f"v_cndmask_b32 v{16+8*it+k}, v{16+8*it+k}, 0, vcc")
        a("v_lshlrev_b32 v4, 4, v4")
        W=[16+8*it+k for k in range(8)]
        for q in range(8):
            for k in range(4):
                e=8-q+2*k
                if e%2==0: a(f"v_mov_b32 v{40+k}, v{W[e//2]}")
                else: a(f"v_alignbit_b32 v{40+k}, v{W[e//2+1]}, v{W[e//2]}, 16")
            a(f"ds_write_b128 v4, v[40:43] offset:{q*CP}")
            a("s_nop 1")
    a("s_waitcnt lgkmcnt(0)")
    a("s_barrier")
    le=a.newlabel("cv_skip")
    a("v_readfirstlane_b32 s30, v1")
    a("s_nop 3")
    a("s_cmp_eq_u32 s30, 3")
    a(f"s_cbranch_scc1 {le}")
    a("v_and_b32 v7, 31, v2\n v_lshrrev_b32 v8, 5, v2")
    a("v_and_b32 v3, 7, v7")
    a(f"v_mul_u32_u24 v3, {CP}, v3")
    a("v_and_b32 v4, 24, v7")
    a("v_lshlrev_b32 v4, 1, v4")
    a("v_sub_u32 v3, v3, v4")
    a("v_lshl_add_u32 v3, v8, 4, v3")
    a("s_lshr_b32 s31, s30, 1")
    a("s_mul_i32 s32, s31, 2048")
    a("s_sub_u32 s32, %d, s32"%(4096-2048))
    a("v_add_u32 v3, s32, v3")
    a("s_min_u32 s33, s30, 1")
    a("s_mul_i32 s33, s33, 32")
    a("s_mul_i32 s34, s31, 32")
    a("s_sub_u32 s33, s33, s34")
    a("v_add_u32 v4, s33, v7")
    a("v_mul_lo_u32 v4, v4, s29")
    a("v_lshl_add_u32 v4, v8, 4, v4")
    for r in range(16): a(f"v_mov_b32 v{64+r}, 0")
    lm=a.newlabel("cv_m"); a("s_cmp_eq_u32 s30, 2"); a(f"s_cbranch_scc1 {lm}")
    a("ds_read_b128 v[32:35], v3 offset:2080")
    a(f"ds_read_b128 v[36:39], v4 offset:{U0+32*80+32}")
    a("s_waitcnt lgkmcnt(0)")
    a("v_mfma_f32_32x32x16_bf16 v[64:79], v[32:35], v[36:39], v[64:79]")
    a.label(lm)
    for s in range(64):
        if s==63:
            lsk=a.newlabel("cv_l"); a("s_cmp_eq_u32 s30, 2"); a(f"s_cbranch_scc1 {lsk}")
        sg=s//2
        boff=U0+(32-sg)*80 if s%2==0 else U0+(32-sg-1)*80+32
        if s==0:
            for p in range(3):
                bo=U0+(32-p//2)*80 if p%2==0 else U0+(32-p//2-1)*80+32
                a(f"ds_read_b128 v[{32+8*(p%4)}:{35+8*(p%4)}], v3 offset:{32*(64-p)}")
                a(f"ds_read_b128 v[{36+8*(p%4)}:{39+8*(p%4)}], v4 offset:{bo}")
        if s+3<64:
            p=s+3; bo=U0+(32-p//2)*80 if p%2==0 else U0+(32-p//2-1)*80+32
            a(f"ds_read_b128 v[{32+8*(p%4)}:{35+8*(p%4)}], v3 offset:{32*(64-p)}")
            a(f"ds_read_b128 v[{36+8*(p%4)}:{39+8*(p%4)}], v4 offset:{bo}")
        a(f"s_waitcnt lgkmcnt({2*min(3,63-s)})")
        a(f"v_mfma_f32_32x32x16_bf16 v[64:79], v[{32+8*(s%4)}:{35+8*(s%4)}], v[{36+8*(s%4)}:{39+8*(s%4)}], v[64:79]")
    a.label(lsk)
    a("s_waitcnt lgkmcnt(0)")
    a("s_nop 7\n s_nop 7")
    a("v_lshlrev_b32 v5, 7, v7")
    a("v_lshl_add_u32 v5, v8, 4, v5")
    a("v_lshl_add_u32 v5, v1, 12, v5")
    for q in range(4): a(f"ds_write_b128 v5, v[{64+4*q}:{67+4*q}] offset:{RED+32*q}")
    a.label(le)
    a("s_waitcnt lgkmcnt(0)")
    a("s_barrier")
    a("s_load_dwordx2 s[4:5], s[0:1], 64")
    a("s_lshl_b32 s6, s24, 1")
    a("v_mov_b32 v9, s6")
    a("s_waitcnt lgkmcnt(0)")
    a("global_load_ushort v9, v9, s[4:5]")
    a("v_lshlrev_b32 v3, 5, v0")
    a("v_cmp_lt_u32 vcc, 0x7f, v0")
    a("v_mov_b32 v6, 0x1000")
    a("s_nop 1")
    a("v_cndmask_b32 v6, 0, v6, vcc")
    a(f"ds_read_b128 v[16:19], v3 offset:{RED}")
    a(f"ds_read_b128 v[20:23], v3 offset:{RED+16}")
    a("v_add_u32 v7, v3, v6")
    a(f"ds_read_b128 v[24:27], v7 offset:{RED}")
    a(f"ds_read_b128 v[28:31], v7 offset:{RED+16}")
    a("v_lshrrev_b32 v4, 2, v0")
    a("v_add_u32 v4, 32, v4")
    a("v_mul_lo_u32 v4, v4, s29")
    a("v_and_b32 v5, 3, v0")
    a("v_lshl_add_u32 v4, v5, 4, v4")
    a(f"ds_read_b128 v[12:15], v4 offset:{U0}")
    a("v_cndmask_b32 v8, 0, 1.0, vcc")
    a("s_waitcnt vmcnt(0) lgkmcnt(0)")
    a("v_lshlrev_b32 v9, 16, v9")
    for e in range(8):
        a(f"v_fma_f32 v{16+e}, v{24+e}, v8, v{16+e}")
        rbf(a,16+e)
        a(f"v_lshlrev_b32 v10, 16, v{12+e//2}" if e%2==0 else f"v_and_b32 v10, 0xffff0000, v{12+e//2}")
        a("v_mul_f32 v10, v10, v9")
        rbf(a,10)
        a(f"v_add_f32 v{16+e}, v{16+e}, v10")
    for k in range(4): a(f"v_cvt_pk_bf16_f32 v{40+k}, v{16+2*k}, v{17+2*k}")
    a("v_lshlrev_b32 v3, 4, v0")
    a("v_add_u32 v3, s28, v3")
    a("v_add_u32 v3, 0x%x, v3"%WS_YA)
    a("buffer_store_dwordx4 v[40:43], v3, s[12:15], 0 offen")
    a("s_waitcnt vmcnt(0)")

def prolog(a,name,n):
    a.raw(f".globl {name}\n.p2align 8\n.type {name},@function")
    a.label(name)
    le=a.newlabel("end")
    a(f"s_cmp_ge_u32 s2, {n}")
    a(f"s_cbranch_scc1 {le}")
    a("s_load_dwordx2 s[6:7], s[0:1], 128")
    a("s_waitcnt lgkmcnt(0)")
    srd(a,12,6,WS_SIZE)
    return le
def gen_k2(a):
    le=prolog(a,"k2_kernel",K2_WGS); lc=a.newlabel("conv")
    a(f"s_cmp_ge_u32 s2, {N_G1}")
    a(f"s_cbranch_scc1 {lc}")
    a("s_lshr_b32 s44, s2, 4\n s_lshl_b32 s44, s44, 7")
    a("s_and_b32 s45, s2, 15\n s_lshl_b32 s45, s45, 7")
    gemm_body(a,128,128,512,WS_W1T,1024,WS_Y2,1024,44,45,2,epi1,pre1)
    a("s_endpgm")
    a.label(lc)
    a(f"s_sub_u32 s24, s2, {N_G1}")
    conv_body(a)
    a.label(le); a("s_endpgm")
def gen_k3(a):
    le=prolog(a,"k3_kernel",256)
    a("s_lshr_b32 s44, s2, 5\n s_lshl_b32 s44, s44, 6")
    a("s_and_b32 s45, s2, 31\n s_lshl_b32 s45, s45, 6")
    gemm_body(a,64,64,1792,WS_W2T,3584,WS_H,3584,44,45,9,epi2,pre2,NW=8)
    a.label(le); a("s_endpgm")
```
